```python
import torch

def _softmax(x, axis=-1):
    return torch.softmax(x, dim=axis)
def _gelu(x):
    return torch.nn.functional.gelu(x, approximate="tanh")
def _silu(x):
    return torch.nn.functional.silu(x)
def _sigmoid(x):
    return torch.sigmoid(x)
def _layernorm(x, axis=-1, eps=1e-5):
    m = x.mean(dim=axis, keepdim=True)
    v = x.var(dim=axis, keepdim=True, unbiased=False)
    return (x - m) / torch.sqrt(v + eps)
def _scatter_add(tgt, idx, src, axis=0):
    return tgt.clone().index_add_(axis, idx, src)
def _segment_sum(src, seg, n):
    out = torch.zeros((n,) + src.shape[1:], dtype=src.dtype)
    return out.index_add_(0, seg, src)
def _pad(x, pw):
    flat = tuple(v for pair in reversed(pw) for v in pair)
    return torch.nn.functional.pad(x, flat)

kernel_name = 'standalone__low_rank_proj_linformer__sampling'

def setup_inputs():

    _w = (lambda a: (lambda t: t.to(torch.bfloat16) if t.is_floating_point() else t)(torch.as_tensor(a)))
    B, H, Sq, Skv, Dh, R = 8, 32, 4, 2048, 128, 16
    return {
        "q": _w((lambda *s: torch.randn(*s, dtype=torch.bfloat16) * 0.8)(B, H, Sq, Dh)),
        "k": _w((lambda *s: torch.randn(*s, dtype=torch.bfloat16) * 0.8)(B, H, Skv, Dh)),
        "v": _w((lambda *s: torch.randn(*s, dtype=torch.bfloat16) * 0.05)(B, H, Skv, Dh)),
        "e_proj": _w((lambda *s: torch.randn(*s, dtype=torch.bfloat16) * 0.8)(R, Skv) * (Skv ** -0.5)),
        "f_proj": _w((lambda *s: torch.randn(*s, dtype=torch.bfloat16) * 0.05)(R, Skv) * (Skv ** -0.5)),
    }

def reference(q, k, v, e_proj, f_proj):
    B, H, Sq, Dh = q.shape
    kp = torch.einsum("rn,bhnd->bhrd", e_proj, k)
    vp = torch.einsum("rn,bhnd->bhrd", f_proj, v)
    scores = torch.einsum("bhqd,bhrd->bhqr", q, kp) * (Dh ** -0.5)
    p = _softmax(scores, axis=-1)
    o = torch.einsum("bhqr,bhrd->bhqd", p, vp)
    return o
```

```python
import sys, argparse

NAME = "standalone__low_rank_proj_linformer__sampling"

HEADER = """; Kernarg layout for this problem (64 bytes, ptrs only, base s[0:1]):
"""

class Gen:
    def __init__(self, a):
        self.a = a
        self.L = []
        self.q = []
    def e(self, s):
        self.L.append("    " + s)
    def c(self, s):
        self.L.append("    ; " + s)
    def lab(self, s):
        self.L.append(s + ":")
    def vm(self, s, tag):
        self.e(s)
        self.q.append(tag)
        assert len(self.q) <= 63, "too many outstanding"
    def wait_tag(self, tag):
        idx = max(i for i, t in enumerate(self.q) if t == tag)
        n = len(self.q) - 1 - idx
        self.e(f"s_waitcnt vmcnt({n})")
        self.q = self.q[idx + 1:]

def vr(b, n=1):
    return f"v{b}" if n == 1 else f"v[{b}:{b+n-1}]"
def ar(b, n=1):
    return f"a{b}" if n == 1 else f"a[{b}:{b+n-1}]"

def gen(a):
    g = Gen(a)
    NW, D = a.nw, a.d
    G = 64 // NW
    pol = (" " + a.pol) if a.pol else ""
    epol = (" " + a.epol) if a.epol else ""
    V_KV, V_E, V_Q = 1, 2, 3
    V_LDS = 4
    V_LDSR = 5
    V_OUT = 6
    V_P = 8
    V_T = 12
    NT = 32
    V_KP = V_T + NT
    V_BUF = V_KP + 16
    vend = V_BUF + D * 32
    assert vend <= 256, vend
    A_K, A_V = 0, 32
    A_Q = 64
    A_E = 80
    aend = A_E + D * 4
    accum = (vend + 3) // 4 * 4
    total = accum + aend
    if NW == 8:
        assert total <= 256, total
    assert total <= 512
    S_K, S_V, S_E, S_F, S_Q, S_O = 16, 20, 24, 28, 32, 36
    S_OFF, S_EOFF = 40, 41
    S_SELLO, S_SELHI = 42, 43
    S_W = 3
    lds_bytes = 2 * NW * 8192

    L = g.L
    L.append(HEADER.rstrip("\n"))
    L.append(f"; @launch grid=(256,1,1) block=({NW*64},1,1) lds={max(lds_bytes, a.minlds)}")
    L.append('.amdgcn_target "amdgcn-amd-amdhsa--gfx950"')
    L.append(".text")
    L.append(f".globl {NAME}_kernel")
    L.append(".p2align 8")
    L.append(f".type {NAME}_kernel,@function")
    L.append(f"{NAME}_kernel:")
    e = g.e
    e("s_cmp_ge_u32 s2, 256")
    e("s_cbranch_scc1 L_end")
    e("s_load_dwordx8 s[4:11], s[0:1], 0")
    e("s_load_dwordx4 s[12:15], s[0:1], 32")
    e("v_lshrrev_b32 v7, 6, v0")
    e("v_and_b32 v0, 63, v0")
    e("v_readfirstlane_b32 s3, v7")
    e("v_and_b32 v10, 15, v0")
    e("v_lshrrev_b32 v11, 4, v0")
    e(f"v_lshlrev_b32 v{V_KV}, 11, v11")
    e(f"v_lshl_add_u32 v{V_KV}, v10, 4, v{V_KV}")
    e(f"v_lshlrev_b32 v{V_E}, 12, v10")
    e(f"v_lshl_add_u32 v{V_E}, v11, 4, v{V_E}")
    e("s_lshl_b32 s44, s2, 19")
    e(f"s_mov_b32 s{S_K+2}, 0x80000")
    e(f"s_mov_b32 s{S_K+3}, 0x20000")
    e(f"s_mov_b32 s{S_E+2}, 0x10000")
    e(f"s_mov_b32 s{S_E+3}, 0x20000")
    if a.pattern == "inter":
        e(f"s_lshl_b32 s{S_OFF}, s3, 13")
        step = NW * 8192
    else:
        import math
        e(f"s_lshl_b32 s{S_OFF}, s3, {int(math.log2(G*8192))}")
        step = 8192
    e(f"s_lshr_b32 s{S_EOFF}, s{S_OFF}, 7")
    e(f"s_mov_b32 s45, s{S_OFF}")
    e(f"s_mov_b32 s46, s{S_EOFF}")
    e("s_waitcnt lgkmcnt(0)")
    e(f"s_add_u32 s{S_K}, s6, s44")
    e(f"s_addc_u32 s{S_K+1}, s7, 0")
    e(f"s_mov_b32 s{S_E}, s10")
    e(f"s_mov_b32 s{S_E+1}, s11")

    def issue(t):
        ph = 0 if t < G else 1
        slot = t % D
        srd = S_K if ph == 0 else S_V
        esrd = S_E if ph == 0 else S_F
        if t == G:
            e(f"s_mov_b32 s{S_OFF}, s45")
            e(f"s_mov_b32 s{S_EOFF}, s46")
        for i in range(8):
            off = f" offset:{i*256}" if i else ""
            g.vm(f"buffer_load_dwordx4 {vr(V_BUF+slot*32+i*4,4)}, v{V_KV}, s[{srd}:{srd+3}], s{S_OFF} offen{off}{pol}", ("g", t))
        g.vm(f"buffer_load_dwordx4 {ar(A_E+slot*4,4)}, v{V_E}, s[{esrd}:{esrd+3}], s{S_EOFF} offen{epol}", ("g", t))
        if t != G - 1 and t != 2 * G - 1:
            e(f"s_add_u32 s{S_OFF}, s{S_OFF}, {step}")
            e(f"s_add_u32 s{S_EOFF}, s{S_EOFF}, {step//128}")

    issue(0)
    e(f"s_add_u32 s{S_V}, s8, s44")
    e(f"s_addc_u32 s{S_V+1}, s9, 0")
    e(f"s_mov_b32 s{S_V+2}, 0x80000")
    e(f"s_mov_b32 s{S_V+3}, 0x20000")
    e(f"s_mov_b32 s{S_F}, s12")
    e(f"s_mov_b32 s{S_F+1}, s13")
    e(f"s_mov_b32 s{S_F+2}, 0x10000")
    e(f"s_mov_b32 s{S_F+3}, 0x20000")
    for t in range(1, D):
        issue(t)
    e("s_lshl_b32 s47, s2, 10")
    e(f"s_add_u32 s{S_Q}, s4, s47")
    e(f"s_addc_u32 s{S_Q+1}, s5, 0")
    e(f"s_mov_b32 s{S_Q+2}, 0x400")
    e(f"s_mov_b32 s{S_Q+3}, 0x20000")
    e(f"s_add_u32 s{S_O}, s14, s47")
    e(f"s_addc_u32 s{S_O+1}, s15, 0")
    e(f"s_mov_b32 s{S_O+2}, 0x400")
    e(f"s_mov_b32 s{S_O+3}, 0x20000")
    e(f"s_mov_b32 s{S_SELLO}, 0x05040100")
    e(f"s_mov_b32 s{S_SELHI}, 0x07060302")
    e(f"v_lshrrev_b32 v{V_Q}, 2, v10")
    e(f"v_lshlrev_b32 v{V_Q}, 8, v{V_Q}")
    e(f"v_lshl_add_u32 v{V_Q}, v11, 6, v{V_Q}")
    for m in range(4):
        off = f" offset:{m*16}" if m else ""
        g.vm(f"buffer_load_dwordx4 {ar(A_Q+m*4,4)}, v{V_Q}, s[{S_Q}:{S_Q+3}], 0 offen{off}", "q")
    e(f"v_lshlrev_b32 v{V_LDSR}, 4, v0")
    e("s_lshl_b32 s48, s3, 13")
    e(f"v_add_u32 v{V_LDS}, s48, v{V_LDSR}")
    tiles_per_wave = 8 // NW
    e(f"s_lshl_b32 s49, s3, {1 if tiles_per_wave == 1 else 2}")
    e(f"v_add_u32 v{V_OUT}, s49, v{V_LDSR}")

    def compute(t):
        ph = 0 if t < G else 1
        slot = t % D
        first = (t == 0 or t == G)
        acc = A_K if ph == 0 else A_V
        B = V_BUF + slot * 32
        g.c(f"--- compute step {t}")
        g.wait_tag(("g", t))
        def perms(jj):
            tt, h = jj // 2, jj % 2
            sel = S_SELHI if h else S_SELLO
            for u in range(4):
                e(f"v_perm_b32 v{V_T + (jj*4) % NT + u}, v{B + (2*u+1)*4 + tt}, v{B + (2*u)*4 + tt}, s{sel}")
        def mfma(jj):
            T = vr(V_T + (jj * 4) % NT, 4)
            E = ar(A_E + slot * 4, 4)
            C = "0" if first else ar(acc + jj * 4, 4)
            if ph == 0:
                e(f"v_mfma_f32_16x16x32_bf16 {ar(acc+jj*4,4)}, {T}, {E}, {C}")
            else:
                e(f"v_mfma_f32_16x16x32_bf16 {ar(acc+jj*4,4)}, {E}, {T}, {C}")
        perms(0)
        for jj in range(8):
            if jj + 1 < 8:
                perms(jj + 1)
            else:
                e("s_nop 1")
            mfma(jj)

    def write_partials(acc, base):
        e("s_nop 7")
        for jj in range(8):
            e(f"ds_write_b128 v{V_LDS}, {ar(acc+jj*4,4)} offset:{base + jj*1024}")

    def softmax():
        g.c("--- softmax block")
        e("s_waitcnt lgkmcnt(0)")
        e("s_barrier")
        for u in range(4):
            nper = NT // 8
            rounds = NW // nper
            for rd in range(rounds):
                for tl in range(2):
                    for w in range(nper):
                        ww = rd * nper + w
                        dst = V_T + (tl * nper + w) * 4
                        base = ww * 8192 + (2 * u + tl) * 1024
                        e(f"ds_read_b128 {vr(dst,4)}, v{V_LDSR} offset:{base}")
                e("s_waitcnt lgkmcnt(0)")
                for tl in range(2):
                    b = V_T + tl * nper * 4
                    for i in range(4):
                        e(f"v_add_f32 v{b+i}, v{b+i}, v{b+4+i}")
                        e(f"v_add_f32 v{b+8+i}, v{b+8+i}, v{b+12+i}")
                    for i in range(4):
                        e(f"v_add_f32 v{b+i}, v{b+i}, v{b+8+i}")
                    if rounds > 1:
                        sc = V_SC + tl * 4
                        for i in range(4):
                            if rd == 0:
                                e(f"v_mov_b32 v{sc+i}, v{b+i}")
                            elif rd < rounds - 1:
                                e(f"v_add_f32 v{sc+i}, v{sc+i}, v{b+i}")
                            else:
                                e(f"v_add_f32 v{b+i}, v{sc+i}, v{b+i}")
            b0 = V_T
            b1 = V_T + nper * 4
            for m in range(4):
                e(f"v_cvt_pk_bf16_f32 v{V_KP + m*4 + u}, v{b0+m}, v{b1+m}")
        g.wait_tag("q") if "q" in g.q else None
        e("s_nop 1")
        S = V_T
        for m in range(4):
            C = "0" if m == 0 else vr(S, 4)
            e(f"v_mfma_f32_16x16x32_bf16 {vr(S,4)}, {vr(V_KP+m*4,4)}, {ar(A_Q+m*4,4)}, {C}")
        e("s_mov_b32 s50, 0x3db504f3")
        e("s_mov_b32 s51, 0x3fb8aa3b")
        e("s_nop 7")
        X = V_T + 4
        def round_bf16(src):
            e(f"v_cvt_pk_bf16_f32 v{X}, v{src}, v{src+1}")
            e(f"v_cvt_pk_bf16_f32 v{X+1}, v{src+2}, v{src+3}")
            e(f"v_lshlrev_b32 v{src}, 16, v{X}")
            e(f"v_and_b32 v{src+1}, 0xffff0000, v{X}")
            e(f"v_lshlrev_b32 v{src+2}, 16, v{X+1}")
            e(f"v_and_b32 v{src+3}, 0xffff0000, v{X+1}")
        round_bf16(S)
        for i in range(4):
            e(f"v_mul_f32 v{S+i}, s50, v{S+i}")
        round_bf16(S)
        M = V_T + 8
        e(f"v_max_f32 v{M}, v{S}, v{S+1}")
        e(f"v_max3_f32 v{M}, v{S+2}, v{S+3}, v{M}")
        def xlane(op):
            e(f"v_mov_b32 v{M+1}, v{M}")
            e("s_nop 1")
            e(f"v_permlane32_swap_b32 v{M}, v{M+1}")
            e("s_nop 1")
            e(f"{op} v{M}, v{M}, v{M+1}")
            e(f"v_mov_b32 v{M+1}, v{M}")
            e("s_nop 1")
            e(f"v_permlane16_swap_b32 v{M}, v{M+1}")
            e("s_nop 1")
            e(f"{op} v{M}, v{M}, v{M+1}")
        xlane("v_max_f32")
        for i in range(4):
            e(f"v_sub_f32 v{S+i}, v{S+i}, v{M}")
        for i in range(4):
            e(f"v_mul_f32 v{S+i}, s51, v{S+i}")
        for i in range(4):
            e(f"v_exp_f32 v{S+i}, v{S+i}")
        e("s_nop 0")
        e(f"v_add_f32 v{M}, v{S}, v{S+1}")
        e(f"v_add_f32 v{M+2}, v{S+2}, v{S+3}")
        e(f"v_add_f32 v{M}, v{M}, v{M+2}")
        xlane("v_add_f32")
        e(f"v_rcp_f32 v{M}, v{M}")
        e("s_nop 0")
        for i in range(4):
            e(f"v_mul_f32 v{S+i}, v{S+i}, v{M}")
        e(f"v_cvt_pk_bf16_f32 v{V_P}, v{S}, v{S+1}")
        e(f"v_cvt_pk_bf16_f32 v{V_P+1}, v{S+2}, v{S+3}")
        g.c("--- end softmax")

    V_SC = vend
    if NW > 4:
        vend += 8
        accum = (vend + 3) // 4 * 4
        total = accum + aend
        assert total <= 256

    for t in range(2 * G):
        compute(t)
        if t + D < 2 * G:
            issue(t + D)
        if t == G - 1:
            write_partials(A_K, 0)
        if t == G - 1 + a.smdelay:
            softmax()
    VB = NW * 8192
    write_partials(A_V, VB)
    e(f"s_lshl_b32 s48, s3, {10 + (1 if tiles_per_wave == 2 else 0)}")
    e(f"v_add_u32 v{V_LDSR}, s48, v{V_LDSR}")
    e("s_waitcnt lgkmcnt(0)")
    e("s_barrier")
    for tl in range(tiles_per_wave):
        for w in range(NW):
            e(f"ds_read_b128 {vr(V_T + (tl*NW + w)*4, 4)}, v{V_LDSR} offset:{VB + w*8192 + tl*1024}")
    for tl in range(tiles_per_wave):
        b = V_T + tl * NW * 4
        rem = (tiles_per_wave - 1 - tl) * NW
        e(f"s_waitcnt lgkmcnt({rem})")
        n = NW
        while n > 1:
            for k in range(n // 2):
                for i in range(4):
                    e(f"v_add_f32 v{b + k*4 + i}, v{b + k*4 + i}, v{b + (k + n//2)*4 + i}")
            n //= 2
        e(f"v_cvt_pk_bf16_f32 v{V_KP + tl*2}, v{b}, v{b+1}")
        e(f"v_cvt_pk_bf16_f32 v{V_KP + tl*2 + 1}, v{b+2}, v{b+3}")
    e("s_nop 1")
    for tl in range(tiles_per_wave):
        e(f"v_mfma_f32_16x16x16_bf16 {vr(V_KP + 4 + tl*4, 4)}, {vr(V_P,2)}, {vr(V_KP + tl*2, 2)}, 0")
    e("s_nop 7")
    if tiles_per_wave == 2:
        e(f"v_cvt_pk_bf16_f32 v{V_T}, v{V_KP+4}, v{V_KP+8}")
        e(f"buffer_store_dword v{V_T}, v{V_OUT}, s[{S_O}:{S_O+3}], 0 offen")
    else:
        e(f"v_cvt_pk_bf16_f32 v{V_T}, v{V_KP+4}, v{V_KP+4}")
        e(f"buffer_store_short v{V_T}, v{V_OUT}, s[{S_O}:{S_O+3}], 0 offen")
    g.lab("L_end")
    e("s_endpgm")
    L.append('.section .rodata,"a"')
    L.append(".p2align 6")
    L.append(f".amdhsa_kernel {NAME}_kernel")
    L.append(f"  .amdhsa_next_free_vgpr {max(total, a.minvgpr)}")
    L.append("  .amdhsa_next_free_sgpr 64")
    L.append(f"  .amdhsa_accum_offset {accum}")
    L.append("  .amdhsa_group_segment_fixed_size 0")
    L.append("  .amdhsa_kernarg_size 64")
    L.append("  .amdhsa_user_sgpr_count 2")
    L.append("  .amdhsa_user_sgpr_kernarg_segment_ptr 1")
    L.append("  .amdhsa_system_sgpr_workgroup_id_x 1")
    L.append(".end_amdhsa_kernel")
    return "\n".join(L) + "\n"

if __name__ == "__main__":
    p = argparse.ArgumentParser()
    p.add_argument("--nw", type=int, default=4)
    p.add_argument("--d", type=int, default=4)
    p.add_argument("--pol", default="")
    p.add_argument("--epol", default="")
    p.add_argument("--pattern", default="inter")
    p.add_argument("--smdelay", type=int, default=1)
    p.add_argument("--minlds", type=int, default=0)
    p.add_argument("--minvgpr", type=int, default=0)
    p.add_argument("-o", default="/dev/stdout")
    a = p.parse_args()
    open(a.o, "w").write(gen(a))
```

```python
import sys, argparse

NAME = "standalone__low_rank_proj_linformer__sampling"

HEADER = """; Kernarg layout for this problem (64 bytes, ptrs only, base s[0:1]):
"""

class Gen:
    def __init__(self, a):
        self.a = a
        self.L = []
        self.q = []
    def e(self, s):
        self.L.append("    " + s)
    def c(self, s):
        self.L.append("    ; " + s)
    def lab(self, s):
        self.L.append(s + ":")
    def vm(self, s, tag):
        self.e(s)
        self.q.append(tag)
        assert len(self.q) <= 63, "too many outstanding"
    def wait_tag(self, tag):
        idx = max(i for i, t in enumerate(self.q) if t == tag)
        n = len(self.q) - 1 - idx
        self.e(f"s_waitcnt vmcnt({n})")
        self.q = self.q[idx + 1:]

def vr(b, n=1):
    return f"v{b}" if n == 1 else f"v[{b}:{b+n-1}]"
def ar(b, n=1):
    return f"a{b}" if n == 1 else f"a[{b}:{b+n-1}]"

def gen(a):
    g = Gen(a)
    NW, D = a.nw, a.d
    G = 64 // NW
    pol = (" " + a.pol) if a.pol else ""
    epol = (" " + a.epol) if a.epol else ""
    V_KV, V_E, V_Q = 1, 2, 3
    V_LDS = 4
    V_LDSR = 5
    V_OUT = 6
    V_P = 8
    V_T = 12
    NT = 32
    V_KP = V_T + NT
    V_BUF = V_KP + 16
    vend = V_BUF + D * 32
    assert vend <= 256, vend
    A_K, A_V = 0, 32
    A_Q = 64
    A_E = 80
    aend = A_E + D * 4
    accum = (vend + 3) // 4 * 4
    total = accum + aend
    if NW == 8:
        assert total <= 256, total
    assert total <= 512
    S_K, S_V, S_E, S_F, S_Q, S_O = 16, 20, 24, 28, 32, 36
    S_OFF, S_EOFF = 40, 41
    S_SELLO, S_SELHI = 42, 43
    S_W = 3
    lds_bytes = 2 * NW * 8192

    L = g.L
    L.append(HEADER.rstrip("\n"))
    L.append(f"; @launch grid=(256,1,1) block=({NW*64},1,1) lds={max(lds_bytes, a.minlds)}")
    L.append('.amdgcn_target "amdgcn-amd-amdhsa--gfx950"')
    L.append(".text")
    L.append(f".globl {NAME}_kernel")
    L.append(".p2align 8")
    L.append(f".type {NAME}_kernel,@function")
    L.append(f"{NAME}_kernel:")
    e = g.e
    e("s_cmp_ge_u32 s2, 256")
    e("s_cbranch_scc1 L_end")
    if a.stamps or a.spin:
        e("s_memrealtime s[60:61]")
        e("s_load_dwordx2 s[58:59], s[0:1], 56")
    e("s_load_dwordx8 s[4:11], s[0:1], 0")
    e("s_load_dwordx4 s[12:15], s[0:1], 32")
    e("v_lshrrev_b32 v7, 6, v0")
    e("v_and_b32 v0, 63, v0")
    e("v_readfirstlane_b32 s3, v7")
    e("v_and_b32 v10, 15, v0")
    e("v_lshrrev_b32 v11, 4, v0")
    e(f"v_lshlrev_b32 v{V_KV}, 11, v11")
    e(f"v_lshl_add_u32 v{V_KV}, v10, 4, v{V_KV}")
    e(f"v_lshlrev_b32 v{V_E}, 12, v10")
    e(f"v_lshl_add_u32 v{V_E}, v11, 4, v{V_E}")
    e("s_lshl_b32 s44, s2, 19")
    e(f"s_mov_b32 s{S_K+2}, 0x80000")
    e(f"s_mov_b32 s{S_K+3}, 0x20000")
    e(f"s_mov_b32 s{S_E+2}, 0x10000")
    e(f"s_mov_b32 s{S_E+3}, 0x20000")
    if a.pattern == "inter":
        e(f"s_lshl_b32 s{S_OFF}, s3, 13")
        step = NW * 8192
    else:
        import math
        e(f"s_lshl_b32 s{S_OFF}, s3, {int(math.log2(G*8192))}")
        step = 8192
    e(f"s_lshr_b32 s{S_EOFF}, s{S_OFF}, 7")
    e(f"s_mov_b32 s45, s{S_OFF}")
    e(f"s_mov_b32 s46, s{S_EOFF}")
    e("s_waitcnt lgkmcnt(0)")
    st = {"n": 0}
    V_ST = 7
    def stamp():
        n = st["n"]
        if n > 0:
            e("s_waitcnt lgkmcnt(0)")
        e(f"v_writelane_b32 v{V_ST}, s{60 + 2*(n%2)}, {n}")
        e(f"s_memrealtime s[{60 + 2*((n+1)%2)}:{61 + 2*((n+1)%2)}]")
        st["n"] = n + 1
    if a.stamps == 2:
        e(f"v_mov_b32 v{V_ST}, 0")
        stamp()
    e(f"s_add_u32 s{S_K}, s6, s44")
    e(f"s_addc_u32 s{S_K+1}, s7, 0")
    e(f"s_mov_b32 s{S_E}, s10")
    e(f"s_mov_b32 s{S_E+1}, s11")

    def issue(t):
        ph = 0 if t < G else 1
        slot = t % D
        srd = S_K if ph == 0 else S_V
        esrd = S_E if ph == 0 else S_F
        if t == G:
            e(f"s_mov_b32 s{S_OFF}, s45")
            e(f"s_mov_b32 s{S_EOFF}, s46")
        for i in range(8):
            off = f" offset:{i*256}" if i else ""
            g.vm(f"buffer_load_dwordx4 {vr(V_BUF+slot*32+i*4,4)}, v{V_KV}, s[{srd}:{srd+3}], s{S_OFF} offen{off}{pol}", ("g", t))
        g.vm(f"buffer_load_dwordx4 {ar(A_E+slot*4,4)}, v{V_E}, s[{esrd}:{esrd+3}], s{S_EOFF} offen{epol}", ("g", t))
        if t != G - 1 and t != 2 * G - 1:
            e(f"s_add_u32 s{S_OFF}, s{S_OFF}, {step}")
            e(f"s_add_u32 s{S_EOFF}, s{S_EOFF}, {step//128}")

    issue(0)
    e(f"s_add_u32 s{S_V}, s8, s44")
    e(f"s_addc_u32 s{S_V+1}, s9, 0")
    e(f"s_mov_b32 s{S_V+2}, 0x80000")
    e(f"s_mov_b32 s{S_V+3}, 0x20000")
    e(f"s_mov_b32 s{S_F}, s12")
    e(f"s_mov_b32 s{S_F+1}, s13")
    e(f"s_mov_b32 s{S_F+2}, 0x10000")
    e(f"s_mov_b32 s{S_F+3}, 0x20000")
    for t in range(1, D):
        issue(t)
    e("s_lshl_b32 s47, s2, 10")
    e(f"s_add_u32 s{S_Q}, s4, s47")
    e(f"s_addc_u32 s{S_Q+1}, s5, 0")
    e(f"s_mov_b32 s{S_Q+2}, 0x400")
    e(f"s_mov_b32 s{S_Q+3}, 0x20000")
    e(f"s_add_u32 s{S_O}, s14, s47")
    e(f"s_addc_u32 s{S_O+1}, s15, 0")
    e(f"s_mov_b32 s{S_O+2}, 0x400")
    e(f"s_mov_b32 s{S_O+3}, 0x20000")
    e(f"s_mov_b32 s{S_SELLO}, 0x05040100")
    e(f"s_mov_b32 s{S_SELHI}, 0x07060302")
    e(f"v_lshrrev_b32 v{V_Q}, 2, v10")
    e(f"v_lshlrev_b32 v{V_Q}, 8, v{V_Q}")
    e(f"v_lshl_add_u32 v{V_Q}, v11, 6, v{V_Q}")
    for m in range(4):
        off = f" offset:{m*16}" if m else ""
        g.vm(f"buffer_load_dwordx4 {ar(A_Q+m*4,4)}, v{V_Q}, s[{S_Q}:{S_Q+3}], 0 offen{off}", "q")
    e(f"v_lshlrev_b32 v{V_LDSR}, 4, v0")
    e("s_lshl_b32 s48, s3, 13")
    e(f"v_add_u32 v{V_LDS}, s48, v{V_LDSR}")
    tiles_per_wave = 8 // NW
    e(f"s_lshl_b32 s49, s3, {1 if tiles_per_wave == 1 else 2}")
    e(f"v_add_u32 v{V_OUT}, s49, v{V_LDSR}")

    def compute(t):
        ph = 0 if t < G else 1
        slot = t % D
        first = (t == 0 or t == G)
        acc = A_K if ph == 0 else A_V
        B = V_BUF + slot * 32
        g.c(f"--- compute step {t}")
        g.wait_tag(("g", t))
        if a.stamps == 1 and t == 0:
            e("s_memrealtime s[62:63]")
        if a.stamps == 1 and t == 2 * G - 1:
            e("s_memrealtime s[64:65]")
        if a.stamps == 2:
            stamp()
        def perms(jj):
            tt, h = jj // 2, jj % 2
            sel = S_SELHI if h else S_SELLO
            for u in range(4):
                e(f"v_perm_b32 v{V_T + (jj*4) % NT + u}, v{B + (2*u+1)*4 + tt}, v{B + (2*u)*4 + tt}, s{sel}")
        def mfma(jj):
            T = vr(V_T + (jj * 4) % NT, 4)
            E = ar(A_E + slot * 4, 4)
            C = "0" if first else ar(acc + jj * 4, 4)
            if ph == 0:
                e(f"v_mfma_f32_16x16x32_bf16 {ar(acc+jj*4,4)}, {T}, {E}, {C}")
            else:
                e(f"v_mfma_f32_16x16x32_bf16 {ar(acc+jj*4,4)}, {E}, {T}, {C}")
        perms(0)
        for jj in range(8):
            if jj + 1 < 8:
                perms(jj + 1)
            else:
                e("s_nop 1")
            mfma(jj)

    def write_partials(acc, base):
        e("s_nop 7")
        for jj in range(8):
            e(f"ds_write_b128 v{V_LDS}, {ar(acc+jj*4,4)} offset:{base + jj*1024}")

    def softmax():
        g.c("--- softmax block")
        e("s_waitcnt lgkmcnt(0)")
        e("s_barrier")
        for u in range(4):
            nper = NT // 8
            rounds = NW // nper
            for rd in range(rounds):
                for tl in range(2):
                    for w in range(nper):
                        ww = rd * nper + w
                        dst = V_T + (tl * nper + w) * 4
                        base = ww * 8192 + (2 * u + tl) * 1024
                        e(f"ds_read_b128 {vr(dst,4)}, v{V_LDSR} offset:{base}")
                e("s_waitcnt lgkmcnt(0)")
                for tl in range(2):
                    b = V_T + tl * nper * 4
                    for i in range(4):
                        e(f"v_add_f32 v{b+i}, v{b+i}, v{b+4+i}")
                        e(f"v_add_f32 v{b+8+i}, v{b+8+i}, v{b+12+i}")
                    for i in range(4):
                        e(f"v_add_f32 v{b+i}, v{b+i}, v{b+8+i}")
                    if rounds > 1:
                        sc = V_SC + tl * 4
                        for i in range(4):
                            if rd == 0:
                                e(f"v_mov_b32 v{sc+i}, v{b+i}")
                            elif rd < rounds - 1:
                                e(f"v_add_f32 v{sc+i}, v{sc+i}, v{b+i}")
                            else:
                                e(f"v_add_f32 v{b+i}, v{sc+i}, v{b+i}")
            b0 = V_T
            b1 = V_T + nper * 4
            for m in range(4):
                e(f"v_cvt_pk_bf16_f32 v{V_KP + m*4 + u}, v{b0+m}, v{b1+m}")
        g.wait_tag("q") if "q" in g.q else None
        e("s_nop 1")
        S = V_T
        for m in range(4):
            C = "0" if m == 0 else vr(S, 4)
            e(f"v_mfma_f32_16x16x32_bf16 {vr(S,4)}, {vr(V_KP+m*4,4)}, {ar(A_Q+m*4,4)}, {C}")
        e("s_mov_b32 s50, 0x3db504f3")
        e("s_mov_b32 s51, 0x3fb8aa3b")
        e("s_nop 7")
        X = V_T + 4
        def round_bf16(src):
            e(f"v_cvt_pk_bf16_f32 v{X}, v{src}, v{src+1}")
            e(f"v_cvt_pk_bf16_f32 v{X+1}, v{src+2}, v{src+3}")
            e(f"v_lshlrev_b32 v{src}, 16, v{X}")
            e(f"v_and_b32 v{src+1}, 0xffff0000, v{X}")
            e(f"v_lshlrev_b32 v{src+2}, 16, v{X+1}")
            e(f"v_and_b32 v{src+3}, 0xffff0000, v{X+1}")
        round_bf16(S)
        for i in range(4):
            e(f"v_mul_f32 v{S+i}, s50, v{S+i}")
        round_bf16(S)
        M = V_T + 8
        e(f"v_max_f32 v{M}, v{S}, v{S+1}")
        e(f"v_max3_f32 v{M}, v{S+2}, v{S+3}, v{M}")
        def xlane(op):
            e(f"v_mov_b32 v{M+1}, v{M}")
            e("s_nop 1")
            e(f"v_permlane32_swap_b32 v{M}, v{M+1}")
            e("s_nop 1")
            e(f"{op} v{M}, v{M}, v{M+1}")
            e(f"v_mov_b32 v{M+1}, v{M}")
            e("s_nop 1")
            e(f"v_permlane16_swap_b32 v{M}, v{M+1}")
            e("s_nop 1")
            e(f"{op} v{M}, v{M}, v{M+1}")
        xlane("v_max_f32")
        for i in range(4):
            e(f"v_sub_f32 v{S+i}, v{S+i}, v{M}")
        for i in range(4):
            e(f"v_mul_f32 v{S+i}, s51, v{S+i}")
        for i in range(4):
            e(f"v_exp_f32 v{S+i}, v{S+i}")
        e("s_nop 0")
        e(f"v_add_f32 v{M}, v{S}, v{S+1}")
        e(f"v_add_f32 v{M+2}, v{S+2}, v{S+3}")
        e(f"v_add_f32 v{M}, v{M}, v{M+2}")
        xlane("v_add_f32")
        e(f"v_rcp_f32 v{M}, v{M}")
        e("s_nop 0")
        for i in range(4):
            e(f"v_mul_f32 v{S+i}, v{S+i}, v{M}")
        e(f"v_cvt_pk_bf16_f32 v{V_P}, v{S}, v{S+1}")
        e(f"v_cvt_pk_bf16_f32 v{V_P+1}, v{S+2}, v{S+3}")
        g.c("--- end softmax")

    V_SC = vend
    if NW > 4:
        vend += 8
        accum = (vend + 3) // 4 * 4
        total = accum + aend
        assert total <= 256

    for t in range(2 * G):
        compute(t)
        if t + D < 2 * G:
            issue(t + D)
        if t == G - 1:
            write_partials(A_K, 0)
        if t == G - 1 + a.smdelay:
            softmax()
    VB = NW * 8192
    write_partials(A_V, VB)
    e(f"s_lshl_b32 s48, s3, {10 + (1 if tiles_per_wave == 2 else 0)}")
    e(f"v_add_u32 v{V_LDSR}, s48, v{V_LDSR}")
    e("s_waitcnt lgkmcnt(0)")
    e("s_barrier")
    for tl in range(tiles_per_wave):
        for w in range(NW):
            e(f"ds_read_b128 {vr(V_T + (tl*NW + w)*4, 4)}, v{V_LDSR} offset:{VB + w*8192 + tl*1024}")
    for tl in range(tiles_per_wave):
        b = V_T + tl * NW * 4
        rem = (tiles_per_wave - 1 - tl) * NW
        e(f"s_waitcnt lgkmcnt({rem})")
        n = NW
        while n > 1:
            for k in range(n // 2):
                for i in range(4):
                    e(f"v_add_f32 v{b + k*4 + i}, v{b + k*4 + i}, v{b + (k + n//2)*4 + i}")
            n //= 2
        e(f"v_cvt_pk_bf16_f32 v{V_KP + tl*2}, v{b}, v{b+1}")
        e(f"v_cvt_pk_bf16_f32 v{V_KP + tl*2 + 1}, v{b+2}, v{b+3}")
    e("s_nop 1")
    for tl in range(tiles_per_wave):
        e(f"v_mfma_f32_16x16x16_bf16 {vr(V_KP + 4 + tl*4, 4)}, {vr(V_P,2)}, {vr(V_KP + tl*2, 2)}, 0")
    e("s_nop 7")
    if tiles_per_wave == 2:
        e(f"v_cvt_pk_bf16_f32 v{V_T}, v{V_KP+4}, v{V_KP+8}")
        e(f"buffer_store_dword v{V_T}, v{V_OUT}, s[{S_O}:{S_O+3}], 0 offen")
    else:
        e(f"v_cvt_pk_bf16_f32 v{V_T}, v{V_KP+4}, v{V_KP+4}")
        e(f"buffer_store_short v{V_T}, v{V_OUT}, s[{S_O}:{S_O+3}], 0 offen")
    if a.stamps == 2:
        e("s_waitcnt vmcnt(0)")
        stamp()
        stamp()
        e("s_getreg_b32 s64, hwreg(HW_REG_XCC_ID)")
        e("s_getreg_b32 s65, hwreg(HW_REG_HW_ID)")
        e(f"v_writelane_b32 v{V_ST}, s64, 62")
        e(f"v_writelane_b32 v{V_ST}, s65, 63")
        e(f"s_mul_i32 s52, s2, {NW}")
        e("s_add_u32 s52, s52, s3")
        e("s_lshl_b32 s52, s52, 8")
        e("s_add_u32 s68, s58, s52")
        e("s_addc_u32 s69, s59, 0")
        e("s_mov_b32 s70, 256")
        e("s_mov_b32 s71, 0x20000")
        e("v_lshlrev_b32 v20, 2, v0")
        e(f"buffer_store_dword v{V_ST}, v20, s[68:71], 0 offen")
    if a.stamps == 1:
        e("s_waitcnt vmcnt(0)")
        e("s_memrealtime s[66:67]")
        e(f"s_mul_i32 s52, s2, {NW}")
        e("s_add_u32 s52, s52, s3")
        e("s_lshl_b32 s52, s52, 5")
        e("s_add_u32 s68, s58, s52")
        e("s_addc_u32 s69, s59, 0")
        e("s_mov_b32 s70, 32")
        e("s_mov_b32 s71, 0x20000")
        e("s_waitcnt lgkmcnt(0)")
        for i in range(8):
            e(f"v_mov_b32 v{12+i}, s{60+i}")
        e("v_mov_b32 v20, 0")
        e("buffer_store_dwordx4 v[12:15], v20, s[68:71], 0 offen")
        e("buffer_store_dwordx4 v[16:19], v20, s[68:71], 0 offen offset:16")
    if a.spin:
        g.lab("L_spin")
        e("s_sleep 1")
        e("s_memrealtime s[62:63]")
        e("s_waitcnt lgkmcnt(0)")
        e("s_sub_u32 s64, s62, s60")
        e(f"s_cmp_lt_u32 s64, {a.spin}")
        e("s_cbranch_scc1 L_spin")
    g.lab("L_end")
    e("s_endpgm")
    L.append('.section .rodata,"a"')
    L.append(".p2align 6")
    L.append(f".amdhsa_kernel {NAME}_kernel")
    L.append(f"  .amdhsa_next_free_vgpr {max(total, a.minvgpr)}")
    L.append("  .amdhsa_next_free_sgpr 80")
    L.append(f"  .amdhsa_accum_offset {accum}")
    L.append("  .amdhsa_group_segment_fixed_size 0")
    L.append("  .amdhsa_kernarg_size 64")
    L.append("  .amdhsa_user_sgpr_count 2")
    L.append("  .amdhsa_user_sgpr_kernarg_segment_ptr 1")
    L.append("  .amdhsa_system_sgpr_workgroup_id_x 1")
    L.append(".end_amdhsa_kernel")
    return "\n".join(L) + "\n"

if __name__ == "__main__":
    p = argparse.ArgumentParser()
    p.add_argument("--nw", type=int, default=4)
    p.add_argument("--d", type=int, default=4)
    p.add_argument("--pol", default="")
    p.add_argument("--epol", default="")
    p.add_argument("--pattern", default="inter")
    p.add_argument("--smdelay", type=int, default=1)
    p.add_argument("--minlds", type=int, default=0)
    p.add_argument("--minvgpr", type=int, default=0)
    p.add_argument("--stamps", type=int, default=0)
    p.add_argument("--spin", type=int, default=0)
    p.add_argument("-o", default="/dev/stdout")
    a = p.parse_args()
    open(a.o, "w").write(gen(a))
```

```python
import sys, argparse, math
from gen import Gen, vr, ar, NAME, HEADER

def gen(a):
    g = Gen(a)
    W, RS = a.w, 32
    G = 64
    assert W % 2 == 0 and W <= RS - 2
    pol = (" " + a.pol) if a.pol else ""
    spol = (" " + a.spol) if a.spol else ""
    V_KV, V_E, V_Q, V_OUT = 1, 2, 3, 4
    V_ST = 7
    V_P = 8
    V_S = 12
    V_KP = 24
    V_ES = 40
    V_T = 56
    V_BUF = V_T + 64
    vend = V_BUF + RS * 4
    assert vend <= 256, vend
    A_K, A_V, A_Q, A_E = 0, 32, 64, 80
    aend = A_E + 16
    accum = (vend + 3) // 4 * 4
    total = accum + aend
    S_D, S_E, S_Q, S_O = 16, 24, 32, 36
    S_VB, S_FB = 20, 22
    S_G = 40
    S_SELLO, S_SELHI = 44, 45
    S_CNT = 46
    L = g.L
    L.append(HEADER.rstrip("\n"))
    L.append(f"; @launch grid=(256,1,1) block=({128 if a.hop else 64},1,1) lds={a.minlds}")
    L.append('.amdgcn_target "amdgcn-amd-amdhsa--gfx950"')
    L.append(".text")
    L.append(f".globl {NAME}_kernel")
    L.append(".p2align 8")
    L.append(f".type {NAME}_kernel,@function")
    L.append(f"{NAME}_kernel:")
    e = g.e
    e("s_cmp_ge_u32 s2, 256")
    e("s_cbranch_scc1 L_end")
    if a.stamps:
        e("s_memrealtime s[60:61]")
        e("s_load_dwordx2 s[58:59], s[0:1], 56")
    e("s_load_dwordx8 s[4:11], s[0:1], 0")
    e("s_load_dwordx4 s[12:15], s[0:1], 32")
    if a.hop:
        e("v_lshrrev_b32 v9, 6, v0")
        e("v_and_b32 v0, 63, v0")
        e("v_readfirstlane_b32 s3, v9")
        e(f"v_lshlrev_b32 v{V_OUT}, 4, v0")
    e("v_and_b32 v10, 15, v0")
    e("v_lshrrev_b32 v11, 4, v0")
    e(f"v_lshlrev_b32 v{V_KV}, 11, v11")
    e(f"v_lshl_add_u32 v{V_KV}, v10, 4, v{V_KV}")
    e(f"v_lshlrev_b32 v{V_E}, 12, v10")
    e(f"v_lshl_add_u32 v{V_E}, v11, 4, v{V_E}")
    e(f"v_lshrrev_b32 v{V_Q}, 2, v10")
    e(f"v_lshlrev_b32 v{V_Q}, 8, v{V_Q}")
    e(f"v_lshl_add_u32 v{V_Q}, v11, 6, v{V_Q}")
    e("s_lshl_b32 s47, s2, 19")
    e("s_lshl_b32 s48, s2, 10")
    e(f"s_mov_b32 s{S_D+2}, 0x8000")
    e(f"s_mov_b32 s{S_D+3}, 0x20000")
    e(f"s_mov_b32 s{S_E+2}, {15*4096+256}")
    e(f"s_mov_b32 s{S_E+3}, 0x20000")
    e(f"s_mov_b32 s{S_Q+2}, 0x400")
    e(f"s_mov_b32 s{S_Q+3}, 0x20000")
    for k in range(1, 4):
        e(f"s_mov_b32 s{S_G+k}, {8192*k}")
    e("s_waitcnt lgkmcnt(0)")
    if a.fakev == 1:
        e("s_mov_b64 s[8:9], s[6:7]")
    if a.fakev == 2:
        e("s_xor_b32 s49, s47, 0x4000000")
        e("s_sub_u32 s49, s49, s47")
        e("s_ashr_i32 s55, s49, 31")
        e("s_add_u32 s8, s6, s49")
        e("s_addc_u32 s9, s7, s55")
    if a.fakef:
        e("s_mov_b64 s[12:13], s[10:11]")
    def stamp():
        e("s_waitcnt lgkmcnt(0)")
        e(f"v_writelane_b32 v{V_ST}, s60, m0")
        e("s_memrealtime s[60:61]")
        e("s_add_u32 m0, m0, 1")
    if a.stamps:
        e(f"v_mov_b32 v{V_ST}, 0")
        e("s_mov_b32 m0, 0")
        e("s_nop 3")
        stamp()
    e(f"s_add_u32 s{S_D}, s6, s47")
    e(f"s_addc_u32 s{S_D+1}, s7, 0")
    e(f"s_mov_b32 s{S_E}, s10")
    e(f"s_mov_b32 s{S_E+1}, s11")
    e(f"s_add_u32 s{S_Q}, s4, s48")
    e(f"s_addc_u32 s{S_Q+1}, s5, 0")

    hop = {"n": 0, "cnt": 0, "on": False}
    if a.hop:
        e(f"s_add_u32 s{S_VB}, s8, s47")
        e(f"s_addc_u32 s{S_VB+1}, s9, 0")
        e(f"s_add_u32 s{S_O}, s14, s48")
        e(f"s_addc_u32 s{S_O+1}, s15, 0")
        e(f"s_mov_b32 s{S_O+2}, 0x400")
        e(f"s_mov_b32 s{S_O+3}, 0x20000")
        e(f"s_cmp_lg_u32 s3, 0")
        e(f"s_cselect_b64 vcc, 0, -1")
        e(f"s_cbranch_scc1 L_hop0")
    def hopstub():
        n = hop["n"]
        g.lab(f"L_hop{n}")
        e(f"s_cbranch_vccz L_hop{n+1}")
        hop["n"] = n + 1
    mode = {"m": "pro"}
    def adv_data():
        e(f"s_add_u32 s{S_D}, s{S_D}, 0x8000")
        e(f"s_addc_u32 s{S_D+1}, s{S_D+1}, 0")
        if mode["m"] == "K":
            e(f"s_cmp_eq_u32 s{S_CNT}, 15")
            e(f"s_cselect_b64 s[{S_D}:{S_D+1}], s[{S_VB}:{S_VB+1}], s[{S_D}:{S_D+1}]")
        elif mode["m"] == "V":
            e(f"s_cmp_eq_u32 s{S_CNT}, 31")
            e(f"s_cselect_b32 s{S_D+2}, 0, s{S_D+2}")
    def adv_e():
        e(f"s_add_u32 s{S_E}, s{S_E}, 256")
        e(f"s_addc_u32 s{S_E+1}, s{S_E+1}, 0")
        if mode["m"] == "K":
            e(f"s_cmp_eq_u32 s{S_CNT}, 14")
            e(f"s_cselect_b64 s[{S_E}:{S_E+1}], s[12:13], s[{S_E}:{S_E+1}]")
        elif mode["m"] == "V":
            e(f"s_cmp_eq_u32 s{S_CNT}, 30")
            e(f"s_cselect_b32 s{S_E+2}, 0, s{S_E+2}")
    def issue_row(n):
        if n % 32 == 0 and n > 0:
            adv_data()
        t, i = n // 8, n % 8
        so = "0" if t % 4 == 0 else f"s{S_G + t % 4}"
        off = f" offset:{i*256}" if i else ""
        g.vm(f"buffer_load_dwordx4 {vr(V_BUF+(n%RS)*4,4)}, v{V_KV}, s[{S_D}:{S_D+3}], {so} offen{off}{pol}", ("r", n))
    def issue_e(t, dst):
        if t % 4 == 0 and t > 0:
            adv_e()
        off = (t % 4) * 64
        o = f" offset:{off}" if off else ""
        g.vm(f"buffer_load_dwordx4 {dst}, v{V_E}, s[{S_E}:{S_E+3}], 0 offen{o}", ("e", t))

    if a.warm == 1 or a.warm == 3:
        e(f"s_add_u32 s{S_VB}, s8, s47")
        e(f"s_addc_u32 s{S_VB+1}, s9, 0")
        e(f"s_add_u32 s{S_O}, s14, s48")
        e(f"s_addc_u32 s{S_O+1}, s15, 0")
        e(f"s_load_dword s52, s[{S_VB}:{S_VB+1}], 0")
        e(f"s_load_dword s53, s[12:13], 0")
        e(f"s_load_dword s54, s[{S_O}:{S_O+1}], 0")
    issue_e(0, ar(A_E, 4))
    if a.qfirst:
        issue_e(1, ar(A_E + 4, 4))
        for m in range(4):
            off = f" offset:{m*16}" if m else ""
            g.vm(f"buffer_load_dwordx4 {ar(A_Q+m*4,4)}, v{V_Q}, s[{S_Q}:{S_Q+3}], 0 offen{off}", "q")
    if a.pf:
        e("s_lshr_b32 s52, s2, 3")
        e("s_and_b32 s53, s52, 15")
        e("s_lshl_b32 s53, s53, 12")
        e("s_cmp_lt_u32 s52, 16")
        e("s_cselect_b64 s[28:29], s[10:11], s[12:13]")
        e("s_mov_b32 s30, 0x10000")
        e("s_mov_b32 s31, 0x20000")
        e("v_lshlrev_b32 v5, 6, v0")
        g.vm(f"buffer_load_dword v6, v5, s[28:31], s53 offen", "w")
    if a.warm >= 2:
        e(f"v_mov_b32 v5, 0")
        if a.warm == 2:
            e(f"s_add_u32 s{S_VB}, s8, s47")
            e(f"s_addc_u32 s{S_VB+1}, s9, 0")
            e(f"s_add_u32 s{S_O}, s14, s48")
            e(f"s_addc_u32 s{S_O+1}, s15, 0")
        g.vm(f"global_load_dword v12, v5, s[{S_VB}:{S_VB+1}]", "w")
        g.vm(f"global_load_dword v13, v5, s[12:13]", "w")
        g.vm(f"global_load_dword v14, v5, s[{S_O}:{S_O+1}]", "w")
    for t in range(-4, 0):
        for u in range(4):
            for k in range(2):
                n = t * 8 + 2 * u + W + k
                if n >= 0:
                    issue_row(n)
            if u == 0:
                issue_e(t + 6, vr(V_ES + ((t + 6) % 4) * 4, 4))
    if a.warm == 0 and not a.hop:
        e(f"s_add_u32 s{S_VB}, s8, s47")
        e(f"s_addc_u32 s{S_VB+1}, s9, 0")
        e(f"s_add_u32 s{S_O}, s14, s48")
        e(f"s_addc_u32 s{S_O+1}, s15, 0")
    e(f"s_mov_b32 s{S_O+2}, 0x400")
    e(f"s_mov_b32 s{S_O+3}, 0x20000")
    e(f"s_mov_b32 s{S_SELLO}, 0x05040100")
    e(f"s_mov_b32 s{S_SELHI}, 0x07060302")
    e("s_mov_b32 s50, 0x3db504f3")
    e("s_mov_b32 s51, 0x3fb8aa3b")
    e(f"s_mov_b32 s{S_CNT}, 0")
    e(f"v_lshlrev_b32 v{V_OUT}, 4, v0")
    for i in range(32):
        e(f"v_mov_b32 v{V_T + 32 + i}, 0")
    for i in range(4):
        e(f"v_accvgpr_write_b32 a{A_E + 12 + i}, 0")
    for i in range(32):
        e(f"v_accvgpr_write_b32 a{A_K + i}, 0")

    def softmax_chunks():
        ch = []
        X = V_S + 4; S = V_S; M = V_S + 8
        for u in range(4):
            c = []
            for m in range(4):
                c.append(f"v_accvgpr_read_b32 v{V_S+2*m}, a{A_K + (2*u)*4 + m}")
                c.append(f"v_accvgpr_read_b32 v{V_S+2*m+1}, a{A_K + (2*u+1)*4 + m}")
            for m in range(4):
                c.append(f"v_cvt_pk_bf16_f32 v{V_KP + m*4 + u}, v{V_S+2*m}, v{V_S+2*m+1}")
            ch.append(c)
        c = []
        for m in range(4):
            C = "0" if m == 0 else vr(S, 4)
            c.append(f"v_mfma_f32_16x16x32_bf16 {vr(S,4)}, {vr(V_KP+m*4,4)}, {ar(A_Q+m*4,4)}, {C}")
        ch.append(c)
        def rb(src):
            return [f"v_cvt_pk_bf16_f32 v{X}, v{src}, v{src+1}",
                    f"v_cvt_pk_bf16_f32 v{X+1}, v{src+2}, v{src+3}",
                    f"v_lshlrev_b32 v{src}, 16, v{X}",
                    f"v_and_b32 v{src+1}, 0xffff0000, v{X}",
                    f"v_lshlrev_b32 v{src+2}, 16, v{X+1}",
                    f"v_and_b32 v{src+3}, 0xffff0000, v{X+1}"]
        ch.append(rb(S) + [f"v_mul_f32 v{S+i}, s50, v{S+i}" for i in range(4)])
        ch.append(rb(S) + [f"v_max_f32 v{M}, v{S}, v{S+1}", f"v_max3_f32 v{M}, v{S+2}, v{S+3}, v{M}", f"v_mov_b32 v{M+1}, v{M}"])
        def xl(op, tail):
            return [[f"v_permlane32_swap_b32 v{M}, v{M+1}", "s_nop 1", f"{op} v{M}, v{M}, v{M+1}", f"v_mov_b32 v{M+1}, v{M}"],
                    [f"v_permlane16_swap_b32 v{M}, v{M+1}", "s_nop 1", f"{op} v{M}, v{M}, v{M+1}"] + tail]
        ch += xl("v_max_f32", [f"v_sub_f32 v{S+i}, v{S+i}, v{M}" for i in range(4)] + [f"v_mul_f32 v{S+i}, s51, v{S+i}" for i in range(4)])
        ch.append([f"v_exp_f32 v{S+i}, v{S+i}" for i in range(4)] + ["s_nop 0",
                  f"v_add_f32 v{M}, v{S}, v{S+1}", f"v_add_f32 v{M+2}, v{S+2}, v{S+3}", f"v_add_f32 v{M}, v{M}, v{M+2}", f"v_mov_b32 v{M+1}, v{M}"])
        ch += xl("v_add_f32", [f"v_rcp_f32 v{M}, v{M}"])
        ch.append([f"v_mul_f32 v{S+i}, v{S+i}, v{M}" for i in range(4)] +
                  [f"v_cvt_pk_bf16_f32 v{V_P}, v{S}, v{S+1}", f"v_cvt_pk_bf16_f32 v{V_P+1}, v{S+2}, v{S+3}"])
        return ch

    def mfma(t, jj):
        ph = 0 if t < G else 1
        acc = A_K if ph == 0 else A_V
        T = vr(V_T + (t % 2) * 32 + jj * 4, 4)
        E = ar(A_E + (t % 4) * 4, 4)
        C = "0" if t == G else ar(acc + jj * 4, 4)
        if ph == 0:
            e(f"v_mfma_f32_16x16x32_bf16 {ar(acc+jj*4,4)}, {T}, {E}, {C}")
        else:
            e(f"v_mfma_f32_16x16x32_bf16 {ar(acc+jj*4,4)}, {E}, {T}, {C}")

    def body(t0, chunks=None):
        for t in range(t0, t0 + 4):
            g.c(f"--- step {t % 4}")
            for u in range(4):
                n0 = t * 8 + 2 * u
                if a.fine:
                    g.wait_tag(("r", n0))
                    issue_row(n0 + W)
                    g.wait_tag(("r", n0 + 1))
                    issue_row(n0 + W + 1)
                else:
                    g.wait_tag(("r", n0 + 1))
                    issue_row(n0 + W)
                    issue_row(n0 + W + 1)
                if u == 0:
                    assert ("e", t + 2) not in g.q
                    s = (t + 2) % 4
                    for i in range(4):
                        e(f"v_accvgpr_write_b32 a{A_E + s*4 + i}, v{V_ES + s*4 + i}")
                    issue_e(t + 6, vr(V_ES + s * 4, 4))
                r0 = V_BUF + (n0 % RS) * 4
                r1 = V_BUF + ((n0 + 1) % RS) * 4
                for jj in range(8):
                    tt, h = jj // 2, jj % 2
                    sel = S_SELHI if h else S_SELLO
                    e(f"v_perm_b32 v{V_T + (t%2)*32 + jj*4 + u}, v{r1 + tt}, v{r0 + tt}, s{sel}")
                    if jj in (3, 7):
                        mfma(t - 1, 2 * u + (1 if jj == 7 else 0))
                pi = (t - t0) * 4 + u
                if chunks and a.nosm:
                    del chunks[:]
                if chunks and pi >= 1:
                    for ins in chunks.pop(0):
                        e(ins)
        if a.stamps:
            stamp()

    def loop(label, t0, m, last):
        mode["m"] = m
        e(".p2align 6") if a.align else None
        g.lab(label)
        start = len(L)
        body(t0)
        txt0 = L[start:]
        del L[start:]
        body(t0 + 4)
        txt1 = L[start:]
        assert txt0 == txt1, "loop body not uniform"
        e(f"s_add_u32 s{S_CNT}, s{S_CNT}, 1")
        e(f"s_cmp_lt_u32 s{S_CNT}, {last}")
        e(f"s_cbranch_scc1 {label}")

    def retag(t_from, t_to):
        d = t_to - t_from
        g.q = [(("r", x[1] + d * 8) if x[0] == "r" else ("e", x[1] + d)) if isinstance(x, tuple) else x for x in g.q]

    assert a.qfirst
    loop("L_k", 0, "K", 16)
    L.append("; HOPSTART")
    retag(8, 64)
    mode["m"] = "Vf"
    ch = softmax_chunks()
    body(64, ch)
    assert not ch
    e(f"s_mov_b32 s{S_CNT}, 17")
    loop("L_v", 68, "V", 32)
    t = 127
    for jj in range(8):
        mfma(t, jj)
    def cvt_tile(jj):
        for i in range(4):
            e(f"v_accvgpr_read_b32 v{V_T + jj*4 + i}, a{A_V + jj*4 + i}")
        e(f"v_cvt_pk_bf16_f32 v{V_KP + jj*2}, v{V_T + jj*4}, v{V_T + jj*4 + 1}")
        e(f"v_cvt_pk_bf16_f32 v{V_KP + jj*2 + 1}, v{V_T + jj*4 + 2}, v{V_T + jj*4 + 3}")
    e("s_nop 0")
    O = V_T + 32
    for jj in range(8):
        cvt_tile(jj)
        if jj >= 1:
            e(f"v_mfma_f32_16x16x16_bf16 {vr(O + (jj-1)*4, 4)}, {vr(V_P,2)}, {vr(V_KP + (jj-1)*2, 2)}, 0")
    e("s_nop 1")
    e(f"v_mfma_f32_16x16x16_bf16 {vr(O + 7*4, 4)}, {vr(V_P,2)}, {vr(V_KP + 7*2, 2)}, 0")
    for k in range(3):
        e(f"v_cvt_pk_bf16_f32 v{V_T + k}, v{O + 2*k*4}, v{O + (2*k+1)*4}")
    e("s_nop 4")
    e(f"v_cvt_pk_bf16_f32 v{V_T + 3}, v{O + 6*4}, v{O + 7*4}")
    e(f"buffer_store_dwordx4 {vr(V_T,4)}, v{V_OUT}, s[{S_O}:{S_O+3}], 0 offen{spol}")
    L.append("; HOPEND")
    if a.hop:
        i0 = L.index("; HOPSTART"); i1 = L.index("; HOPEND")
        seg = L[i0+1:i1]
        out = []; cnt = a.hop; n = 0
        for ln in seg:
            isinst = ln.startswith("    ") and not ln.strip().startswith(";") and not ln.strip().startswith(".")
            if isinst:
                if cnt >= a.hop:
                    out.append(f"L_hop{n}:")
                    out.append(f"    s_cbranch_vccz L_hop{n+1}")
                    n += 1; cnt = 0
                cnt += 4 if ln.strip().startswith(("s_nop","s_waitcnt","s_cbranch","s_cmp","s_cselect","s_addc")) else 8
            out.append(ln)
        L[i0+1:i1] = out
        hop["last"] = n
    if a.stamps:
        e("s_waitcnt vmcnt(0)")
        stamp()
        stamp()
        e("s_getreg_b32 s64, hwreg(HW_REG_XCC_ID)")
        e("s_getreg_b32 s65, hwreg(HW_REG_HW_ID)")
        e(f"v_writelane_b32 v{V_ST}, s64, 62")
        e(f"v_writelane_b32 v{V_ST}, s65, 63")
        e("s_lshl_b32 s52, s2, 8")
        e("s_add_u32 s68, s58, s52")
        e("s_addc_u32 s69, s59, 0")
        e("s_mov_b32 s70, 256")
        e("s_mov_b32 s71, 0x20000")
        e("v_lshlrev_b32 v20, 2, v0")
        e(f"buffer_store_dword v{V_ST}, v20, s[68:71], 0 offen")
    if a.hop:
        g.lab(f"L_hop{hop['last']}")
    g.lab("L_end")
    e("s_endpgm")
    L.append('.section .rodata,"a"')
    L.append(".p2align 6")
    L.append(f".amdhsa_kernel {NAME}_kernel")
    L.append(f"  .amdhsa_next_free_vgpr {max(total, a.minvgpr)}")
    L.append("  .amdhsa_next_free_sgpr 80")
    L.append(f"  .amdhsa_accum_offset {accum}")
    L.append("  .amdhsa_group_segment_fixed_size 0")
    L.append("  .amdhsa_kernarg_size 64")
    L.append("  .amdhsa_user_sgpr_count 2")
    L.append("  .amdhsa_user_sgpr_kernarg_segment_ptr 1")
    L.append("  .amdhsa_system_sgpr_workgroup_id_x 1")
    L.append(".end_amdhsa_kernel")
    return "\n".join(L) + "\n"

if __name__ == "__main__":
    p = argparse.ArgumentParser()
    p.add_argument("--w", type=int, default=24)
    p.add_argument("--fine", type=int, default=0)
    p.add_argument("--qfirst", type=int, default=1)
    p.add_argument("--warm", type=int, default=0)
    p.add_argument("--hop", type=int, default=0)
    p.add_argument("--fakev", type=int, default=0)
    p.add_argument("--fakef", type=int, default=0)
    p.add_argument("--nosm", type=int, default=0)
    p.add_argument("--pf", type=int, default=0)
    p.add_argument("--align", type=int, default=0)
    p.add_argument("--pol", default="nt")
    p.add_argument("--spol", default="")
    p.add_argument("--minlds", type=int, default=90000)
    p.add_argument("--minvgpr", type=int, default=0)
    p.add_argument("--stamps", type=int, default=0)
    p.add_argument("-o", default="/dev/stdout")
    a = p.parse_args()
    open(a.o, "w").write(gen(a))
```

```python
import sys, argparse, math
from gen import Gen, vr, ar, NAME, HEADER

def gen(a):
    g = Gen(a)
    W, RS = a.w, 32
    G = 64
    assert W % 2 == 0 and W <= RS - 2
    pol = (" " + a.pol) if a.pol else ""
    spol = (" " + a.spol) if a.spol else ""
    V_KV, V_E, V_Q, V_OUT = 1, 2, 3, 4
    V_ST = 7
    V_P = 8
    V_S = 12
    V_KP = 24
    V_ES = 40
    V_T = 56
    V_BUF = V_T + 64
    vend = V_BUF + RS * 4
    assert vend <= 256, vend
    A_K, A_V, A_Q, A_E = 0, 32, 64, 80
    aend = A_E + 16
    accum = (vend + 3) // 4 * 4
    total = accum + aend
    S_D, S_E, S_Q, S_O = 16, 24, 32, 36
    S_VB, S_FB = 20, 22
    S_G = 40
    S_SELLO, S_SELHI = 44, 45
    S_CNT = 46
    L = g.L
    L.append(HEADER.rstrip("\n"))
    L.append(f"; @launch grid=(256,1,1) block=({128 if a.hop else 64},1,1) lds={a.minlds}")
    L.append('.amdgcn_target "amdgcn-amd-amdhsa--gfx950"')
    L.append(".text")
    L.append(f".globl {NAME}_kernel")
    L.append(".p2align 8")
    L.append(f".type {NAME}_kernel,@function")
    L.append(f"{NAME}_kernel:")
    e = g.e
    e("s_cmp_ge_u32 s2, 256")
    e("s_cbranch_scc1 L_end")
    if a.stamps:
        e("s_memrealtime s[60:61]")
        e("s_load_dwordx2 s[58:59], s[0:1], 56")
    e("s_load_dwordx8 s[4:11], s[0:1], 0")
    e("s_load_dwordx4 s[12:15], s[0:1], 32")
    if a.hop:
        e("v_lshrrev_b32 v9, 6, v0")
        e("v_and_b32 v0, 63, v0")
        e("v_readfirstlane_b32 s3, v9")
        e(f"v_lshlrev_b32 v{V_OUT}, 4, v0")
    e("v_and_b32 v10, 15, v0")
    e("v_lshrrev_b32 v11, 4, v0")
    e(f"v_lshlrev_b32 v{V_KV}, 11, v11")
    e(f"v_lshl_add_u32 v{V_KV}, v10, 4, v{V_KV}")
    e(f"v_lshlrev_b32 v{V_E}, 12, v10")
    e(f"v_lshl_add_u32 v{V_E}, v11, 4, v{V_E}")
    e(f"v_lshrrev_b32 v{V_Q}, 2, v10")
    e(f"v_lshlrev_b32 v{V_Q}, 8, v{V_Q}")
    e(f"v_lshl_add_u32 v{V_Q}, v11, 6, v{V_Q}")
    e("s_lshl_b32 s47, s2, 19")
    e("s_lshl_b32 s48, s2, 10")
    e(f"s_mov_b32 s{S_D+2}, 0x8000")
    e(f"s_mov_b32 s{S_D+3}, 0x20000")
    e(f"s_mov_b32 s{S_E+2}, {15*4096+256}")
    e(f"s_mov_b32 s{S_E+3}, 0x20000")
    e(f"s_mov_b32 s{S_Q+2}, 0x400")
    e(f"s_mov_b32 s{S_Q+3}, 0x20000")
    for k in range(1, 4):
        e(f"s_mov_b32 s{S_G+k}, {8192*k}")
    e("s_waitcnt lgkmcnt(0)")
    if a.fakev == 1:
        e("s_mov_b64 s[8:9], s[6:7]")
    if a.fakev == 2:
        e("s_xor_b32 s49, s47, 0x4000000")
        e("s_sub_u32 s49, s49, s47")
        e("s_ashr_i32 s55, s49, 31")
        e("s_add_u32 s8, s6, s49")
        e("s_addc_u32 s9, s7, s55")
    if a.fakef:
        e("s_mov_b64 s[12:13], s[10:11]")
    def stamp():
        e("s_waitcnt lgkmcnt(0)")
        e(f"v_writelane_b32 v{V_ST}, s60, m0")
        e("s_memrealtime s[60:61]")
        e("s_add_u32 m0, m0, 1")
    if a.stamps:
        e(f"v_mov_b32 v{V_ST}, 0")
        e("s_mov_b32 m0, 0")
        e("s_nop 3")
        stamp()
    e(f"s_add_u32 s{S_D}, s6, s47")
    e(f"s_addc_u32 s{S_D+1}, s7, 0")
    e(f"s_mov_b32 s{S_E}, s10")
    e(f"s_mov_b32 s{S_E+1}, s11")
    e(f"s_add_u32 s{S_Q}, s4, s48")
    e(f"s_addc_u32 s{S_Q+1}, s5, 0")

    hop = {"n": 0, "cnt": 0, "on": False}
    if a.hop:
        e(f"s_add_u32 s{S_VB}, s8, s47")
        e(f"s_addc_u32 s{S_VB+1}, s9, 0")
        e(f"s_add_u32 s{S_O}, s14, s48")
        e(f"s_addc_u32 s{S_O+1}, s15, 0")
        e(f"s_mov_b32 s{S_O+2}, 0x400")
        e(f"s_mov_b32 s{S_O+3}, 0x20000")
        e(f"s_cmp_lg_u32 s3, 0")
        e(f"s_cselect_b64 vcc, 0, -1")
        e(f"s_cbranch_scc1 L_hop0")
    def hopstub():
        n = hop["n"]
        g.lab(f"L_hop{n}")
        e(f"s_cbranch_vccz L_hop{n+1}")
        hop["n"] = n + 1
    mode = {"m": "pro"}
    def adv_data():
        e(f"s_add_u32 s{S_D}, s{S_D}, 0x8000")
        e(f"s_addc_u32 s{S_D+1}, s{S_D+1}, 0")
        if mode["m"] == "K":
            e(f"s_cmp_eq_u32 s{S_CNT}, 15")
            e(f"s_cselect_b64 s[{S_D}:{S_D+1}], s[{S_VB}:{S_VB+1}], s[{S_D}:{S_D+1}]")
        elif mode["m"] == "V":
            e(f"s_cmp_eq_u32 s{S_CNT}, 31")
            e(f"s_cselect_b32 s{S_D+2}, 0, s{S_D+2}")
    def adv_e():
        e(f"s_add_u32 s{S_E}, s{S_E}, 256")
        e(f"s_addc_u32 s{S_E+1}, s{S_E+1}, 0")
        if mode["m"] == "K":
            e(f"s_cmp_eq_u32 s{S_CNT}, 14")
            e(f"s_cselect_b64 s[{S_E}:{S_E+1}], s[12:13], s[{S_E}:{S_E+1}]")
        elif mode["m"] == "V":
            e(f"s_cmp_eq_u32 s{S_CNT}, 30")
            e(f"s_cselect_b32 s{S_E+2}, 0, s{S_E+2}")
    def issue_row(n):
        if n % 32 == 0 and n > 0:
            adv_data()
        t, i = n // 8, n % 8
        so = "0" if t % 4 == 0 else f"s{S_G + t % 4}"
        off = f" offset:{i*256}" if i else ""
        g.vm(f"buffer_load_dwordx4 {vr(V_BUF+(n%RS)*4,4)}, v{V_KV}, s[{S_D}:{S_D+3}], {so} offen{off}{pol}", ("r", n))
    def issue_e(t, dst):
        if t % 4 == 0 and t > 0:
            adv_e()
        off = (t % 4) * 64
        o = f" offset:{off}" if off else ""
        g.vm(f"buffer_load_dwordx4 {dst}, v{V_E}, s[{S_E}:{S_E+3}], 0 offen{o}", ("e", t))

    if a.warm == 1 or a.warm == 3:
        e(f"s_add_u32 s{S_VB}, s8, s47")
        e(f"s_addc_u32 s{S_VB+1}, s9, 0")
        e(f"s_add_u32 s{S_O}, s14, s48")
        e(f"s_addc_u32 s{S_O+1}, s15, 0")
        e(f"s_load_dword s52, s[{S_VB}:{S_VB+1}], 0")
        e(f"s_load_dword s53, s[12:13], 0")
        e(f"s_load_dword s54, s[{S_O}:{S_O+1}], 0")
    issue_e(0, ar(A_E, 4))
    if a.qfirst:
        issue_e(1, ar(A_E + 4, 4))
        for m in range(4):
            off = f" offset:{m*16}" if m else ""
            g.vm(f"buffer_load_dwordx4 {ar(A_Q+m*4,4)}, v{V_Q}, s[{S_Q}:{S_Q+3}], 0 offen{off}", "q")
    if a.pf:
        e("s_lshr_b32 s52, s2, 3")
        e("s_and_b32 s53, s52, 15")
        e("s_lshl_b32 s53, s53, 12")
        e("s_cmp_lt_u32 s52, 16")
        e("s_cselect_b64 s[28:29], s[10:11], s[12:13]")
        e("s_mov_b32 s30, 0x10000")
        e("s_mov_b32 s31, 0x20000")
        e("v_lshlrev_b32 v5, 6, v0")
        g.vm(f"buffer_load_dword v6, v5, s[28:31], s53 offen", "w")
    if a.warm >= 2:
        e(f"v_mov_b32 v5, 0")
        if a.warm == 2:
            e(f"s_add_u32 s{S_VB}, s8, s47")
            e(f"s_addc_u32 s{S_VB+1}, s9, 0")
            e(f"s_add_u32 s{S_O}, s14, s48")
            e(f"s_addc_u32 s{S_O+1}, s15, 0")
        if a.wmask & 1: g.vm(f"global_load_dword v12, v5, s[{S_VB}:{S_VB+1}]", "w")
        if a.wmask & 2: g.vm(f"global_load_dword v13, v5, s[12:13]", "w")
        if a.wmask & 4: g.vm(f"global_load_dword v14, v5, s[{S_O}:{S_O+1}]", "w")
    for t in range(-4, 0):
        for u in range(4):
            for k in range(2):
                n = t * 8 + 2 * u + W + k
                if n >= 0:
                    issue_row(n)
            if u == 0:
                issue_e(t + 6, vr(V_ES + ((t + 6) % 4) * 4, 4))
    if a.warm == 0 and not a.hop:
        e(f"s_add_u32 s{S_VB}, s8, s47")
        e(f"s_addc_u32 s{S_VB+1}, s9, 0")
        e(f"s_add_u32 s{S_O}, s14, s48")
        e(f"s_addc_u32 s{S_O+1}, s15, 0")
    e(f"s_mov_b32 s{S_O+2}, 0x400")
    e(f"s_mov_b32 s{S_O+3}, 0x20000")
    e(f"s_mov_b32 s{S_SELLO}, 0x05040100")
    e(f"s_mov_b32 s{S_SELHI}, 0x07060302")
    e("s_mov_b32 s50, 0x3db504f3")
    e("s_mov_b32 s51, 0x3fb8aa3b")
    e(f"s_mov_b32 s{S_CNT}, 0")
    e(f"v_lshlrev_b32 v{V_OUT}, 4, v0")
    for i in range(32):
        e(f"v_mov_b32 v{V_T + 32 + i}, 0")
    for i in range(4):
        e(f"v_accvgpr_write_b32 a{A_E + 12 + i}, 0")
    for i in range(32):
        e(f"v_accvgpr_write_b32 a{A_K + i}, 0")

    def softmax_chunks():
        ch = []
        X = V_S + 4; S = V_S; M = V_S + 8
        for u in range(4):
            c = []
            for m in range(4):
                c.append(f"v_accvgpr_read_b32 v{V_S+2*m}, a{A_K + (2*u)*4 + m}")
                c.append(f"v_accvgpr_read_b32 v{V_S+2*m+1}, a{A_K + (2*u+1)*4 + m}")
            for m in range(4):
                c.append(f"v_cvt_pk_bf16_f32 v{V_KP + m*4 + u}, v{V_S+2*m}, v{V_S+2*m+1}")
            ch.append(c)
        c = []
        for m in range(4):
            C = "0" if m == 0 else vr(S, 4)
            c.append(f"v_mfma_f32_16x16x32_bf16 {vr(S,4)}, {vr(V_KP+m*4,4)}, {ar(A_Q+m*4,4)}, {C}")
        ch.append(c)
        def rb(src):
            return [f"v_cvt_pk_bf16_f32 v{X}, v{src}, v{src+1}",
                    f"v_cvt_pk_bf16_f32 v{X+1}, v{src+2}, v{src+3}",
                    f"v_lshlrev_b32 v{src}, 16, v{X}",
                    f"v_and_b32 v{src+1}, 0xffff0000, v{X}",
                    f"v_lshlrev_b32 v{src+2}, 16, v{X+1}",
                    f"v_and_b32 v{src+3}, 0xffff0000, v{X+1}"]
        ch.append(rb(S) + [f"v_mul_f32 v{S+i}, s50, v{S+i}" for i in range(4)])
        ch.append(rb(S) + [f"v_max_f32 v{M}, v{S}, v{S+1}", f"v_max3_f32 v{M}, v{S+2}, v{S+3}, v{M}", f"v_mov_b32 v{M+1}, v{M}"])
        def xl(op, tail):
            return [[f"v_permlane32_swap_b32 v{M}, v{M+1}", "s_nop 1", f"{op} v{M}, v{M}, v{M+1}", f"v_mov_b32 v{M+1}, v{M}"],
                    [f"v_permlane16_swap_b32 v{M}, v{M+1}", "s_nop 1", f"{op} v{M}, v{M}, v{M+1}"] + tail]
        ch += xl("v_max_f32", [f"v_sub_f32 v{S+i}, v{S+i}, v{M}" for i in range(4)] + [f"v_mul_f32 v{S+i}, s51, v{S+i}" for i in range(4)])
        ch.append([f"v_exp_f32 v{S+i}, v{S+i}" for i in range(4)] + ["s_nop 0",
                  f"v_add_f32 v{M}, v{S}, v{S+1}", f"v_add_f32 v{M+2}, v{S+2}, v{S+3}", f"v_add_f32 v{M}, v{M}, v{M+2}", f"v_mov_b32 v{M+1}, v{M}"])
        ch += xl("v_add_f32", [f"v_rcp_f32 v{M}, v{M}"])
        ch.append([f"v_mul_f32 v{S+i}, v{S+i}, v{M}" for i in range(4)] +
                  [f"v_cvt_pk_bf16_f32 v{V_P}, v{S}, v{S+1}", f"v_cvt_pk_bf16_f32 v{V_P+1}, v{S+2}, v{S+3}"])
        return ch

    def mfma(t, jj):
        ph = 0 if t < G else 1
        acc = A_K if ph == 0 else A_V
        T = vr(V_T + (t % 2) * 32 + jj * 4, 4)
        E = ar(A_E + (t % 4) * 4, 4)
        C = "0" if t == G else ar(acc + jj * 4, 4)
        if ph == 0:
            e(f"v_mfma_f32_16x16x32_bf16 {ar(acc+jj*4,4)}, {T}, {E}, {C}")
        else:
            e(f"v_mfma_f32_16x16x32_bf16 {ar(acc+jj*4,4)}, {E}, {T}, {C}")

    def body(t0, chunks=None):
        for t in range(t0, t0 + 4):
            g.c(f"--- step {t % 4}")
            for u in range(4):
                n0 = t * 8 + 2 * u
                if a.fine:
                    g.wait_tag(("r", n0))
                    issue_row(n0 + W)
                    g.wait_tag(("r", n0 + 1))
                    issue_row(n0 + W + 1)
                else:
                    g.wait_tag(("r", n0 + 1))
                    issue_row(n0 + W)
                    issue_row(n0 + W + 1)
                if u == 0:
                    assert ("e", t + 2) not in g.q
                    s = (t + 2) % 4
                    for i in range(4):
                        e(f"v_accvgpr_write_b32 a{A_E + s*4 + i}, v{V_ES + s*4 + i}")
                    issue_e(t + 6, vr(V_ES + s * 4, 4))
                r0 = V_BUF + (n0 % RS) * 4
                r1 = V_BUF + ((n0 + 1) % RS) * 4
                for jj in range(8):
                    tt, h = jj // 2, jj % 2
                    sel = S_SELHI if h else S_SELLO
                    e(f"v_perm_b32 v{V_T + (t%2)*32 + jj*4 + u}, v{r1 + tt}, v{r0 + tt}, s{sel}")
                    if jj in (3, 7):
                        mfma(t - 1, 2 * u + (1 if jj == 7 else 0))
                pi = (t - t0) * 4 + u
                if chunks and a.nosm:
                    del chunks[:]
                if chunks and pi >= 1:
                    for ins in chunks.pop(0):
                        e(ins)
        if a.stamps:
            stamp()

    def loop(label, t0, m, last):
        mode["m"] = m
        e(".p2align 6") if a.align else None
        g.lab(label)
        start = len(L)
        body(t0)
        txt0 = L[start:]
        del L[start:]
        body(t0 + 4)
        txt1 = L[start:]
        assert txt0 == txt1, "loop body not uniform"
        e(f"s_add_u32 s{S_CNT}, s{S_CNT}, 1")
        e(f"s_cmp_lt_u32 s{S_CNT}, {last}")
        e(f"s_cbranch_scc1 {label}")

    def retag(t_from, t_to):
        d = t_to - t_from
        g.q = [(("r", x[1] + d * 8) if x[0] == "r" else ("e", x[1] + d)) if isinstance(x, tuple) else x for x in g.q]

    assert a.qfirst
    loop("L_k", 0, "K", 16)
    L.append("; HOPSTART")
    retag(8, 64)
    mode["m"] = "Vf"
    ch = softmax_chunks()
    body(64, ch)
    assert not ch
    e(f"s_mov_b32 s{S_CNT}, 17")
    loop("L_v", 68, "V", 32)
    t = 127
    for jj in range(8):
        mfma(t, jj)
    def cvt_tile(jj):
        for i in range(4):
            e(f"v_accvgpr_read_b32 v{V_T + jj*4 + i}, a{A_V + jj*4 + i}")
        e(f"v_cvt_pk_bf16_f32 v{V_KP + jj*2}, v{V_T + jj*4}, v{V_T + jj*4 + 1}")
        e(f"v_cvt_pk_bf16_f32 v{V_KP + jj*2 + 1}, v{V_T + jj*4 + 2}, v{V_T + jj*4 + 3}")
    e("s_nop 0")
    O = V_T + 32
    for jj in range(8):
        cvt_tile(jj)
        if jj >= 1:
            e(f"v_mfma_f32_16x16x16_bf16 {vr(O + (jj-1)*4, 4)}, {vr(V_P,2)}, {vr(V_KP + (jj-1)*2, 2)}, 0")
    e("s_nop 1")
    e(f"v_mfma_f32_16x16x16_bf16 {vr(O + 7*4, 4)}, {vr(V_P,2)}, {vr(V_KP + 7*2, 2)}, 0")
    for k in range(3):
        e(f"v_cvt_pk_bf16_f32 v{V_T + k}, v{O + 2*k*4}, v{O + (2*k+1)*4}")
    e("s_nop 4")
    e(f"v_cvt_pk_bf16_f32 v{V_T + 3}, v{O + 6*4}, v{O + 7*4}")
    e(f"buffer_store_dwordx4 {vr(V_T,4)}, v{V_OUT}, s[{S_O}:{S_O+3}], 0 offen{spol}")
    L.append("; HOPEND")
    if a.hop:
        i0 = L.index("; HOPSTART"); i1 = L.index("; HOPEND")
        seg = L[i0+1:i1]
        out = []; cnt = a.hop; n = 0
        for ln in seg:
            isinst = ln.startswith("    ") and not ln.strip().startswith(";") and not ln.strip().startswith(".")
            if isinst:
                if cnt >= a.hop:
                    out.append(f"L_hop{n}:")
                    out.append(f"    s_cbranch_vccz L_hop{n+1}")
                    n += 1; cnt = 0
                cnt += 4 if ln.strip().startswith(("s_nop","s_waitcnt","s_cbranch","s_cmp","s_cselect","s_addc")) else 8
            out.append(ln)
        L[i0+1:i1] = out
        hop["last"] = n
    if a.stamps:
        e("s_waitcnt vmcnt(0)")
        stamp()
        stamp()
        e("s_getreg_b32 s64, hwreg(HW_REG_XCC_ID)")
        e("s_getreg_b32 s65, hwreg(HW_REG_HW_ID)")
        e(f"v_writelane_b32 v{V_ST}, s64, 62")
        e(f"v_writelane_b32 v{V_ST}, s65, 63")
        e("s_lshl_b32 s52, s2, 8")
        e("s_add_u32 s68, s58, s52")
        e("s_addc_u32 s69, s59, 0")
        e("s_mov_b32 s70, 256")
        e("s_mov_b32 s71, 0x20000")
        e("v_lshlrev_b32 v20, 2, v0")
        e(f"buffer_store_dword v{V_ST}, v20, s[68:71], 0 offen")
    if a.hop:
        g.lab(f"L_hop{hop['last']}")
    g.lab("L_end")
    e("s_endpgm")
    L.append('.section .rodata,"a"')
    L.append(".p2align 6")
    L.append(f".amdhsa_kernel {NAME}_kernel")
    L.append(f"  .amdhsa_next_free_vgpr {max(total, a.minvgpr)}")
    L.append("  .amdhsa_next_free_sgpr 80")
    L.append(f"  .amdhsa_accum_offset {accum}")
    L.append("  .amdhsa_group_segment_fixed_size 0")
    L.append("  .amdhsa_kernarg_size 64")
    L.append("  .amdhsa_user_sgpr_count 2")
    L.append("  .amdhsa_user_sgpr_kernarg_segment_ptr 1")
    L.append("  .amdhsa_system_sgpr_workgroup_id_x 1")
    L.append(".end_amdhsa_kernel")
    return "\n".join(L) + "\n"

if __name__ == "__main__":
    p = argparse.ArgumentParser()
    p.add_argument("--w", type=int, default=24)
    p.add_argument("--fine", type=int, default=0)
    p.add_argument("--qfirst", type=int, default=1)
    p.add_argument("--warm", type=int, default=0)
    p.add_argument("--hop", type=int, default=0)
    p.add_argument("--fakev", type=int, default=0)
    p.add_argument("--fakef", type=int, default=0)
    p.add_argument("--nosm", type=int, default=0)
    p.add_argument("--pf", type=int, default=0)
    p.add_argument("--wmask", type=int, default=7)
    p.add_argument("--align", type=int, default=0)
    p.add_argument("--pol", default="nt")
    p.add_argument("--spol", default="")
    p.add_argument("--minlds", type=int, default=90000)
    p.add_argument("--minvgpr", type=int, default=0)
    p.add_argument("--stamps", type=int, default=0)
    p.add_argument("-o", default="/dev/stdout")
    a = p.parse_args()
    open(a.o, "w").write(gen(a))
```

```python
import sys, argparse, math
from gen import Gen, vr, ar, NAME, HEADER

def isz(ln):
    t = ln.strip()
    op = t.split()[0]
    if op.startswith(("s_nop", "s_waitcnt", "s_cbranch", "s_branch", "s_barrier", "s_cmp", "s_cselect", "s_addc", "s_bcnt", "s_lshr", "s_lshl", "v_add_u32", "v_mov_b32")):
        return 4
    return 8

def gen(a):
    g = Gen(a)
    W, RS, G = a.w, 32, 64
    assert W % 2 == 0 and W <= RS - 2
    pol = (" " + a.pol) if a.pol else ""
    spol = (" " + a.spol) if a.spol else ""
    V_KV, V_E, V_L = 1, 2, 3
    V_SLOT, V_L4, V_ST, V_P, V_FBP, V_FBV = 5, 6, 7, 8, 10, 11
    V_ES, V_T = 12, 28
    V_BUF = V_T + 64
    V_AV = V_BUF + RS * 4
    vend = V_AV + 32
    A_K, A_E = 0, 32
    aend = 48
    accum = (vend + 3) // 4 * 4
    total = accum + aend
    fbs = (" " + a.fbs) if a.fbs else ""
    S_D, S_E, S_B, S_Q, S_O = 20, 24, 28, 32, 36
    S_OFF, S_EO, S_EO7 = 40, 42, 43
    S_SELLO, S_SELHI, S_CNT, S_HO, S_QO, S_VB = 44, 45, 46, 47, 48, 50
    L_KP, L_P = 0, 8192
    M_, LS = a.m, a.ls
    S_ = 1 << LS
    U_ = 8192 // M_
    LU = int(math.log2(U_))
    skip = (M_ * S_ - S_) if M_ > 1 else 0
    omask = 0x7ffff & ~skip & ~(U_ - 1)
    gps = S_ // U_ if M_ > 1 else 64

    L = g.L
    L.append(HEADER.rstrip("\n"))
    L.append(f"; @launch grid=(256,1,1) block=(128,1,1) lds={max(a.minlds, 8704)}")
    L.append('.amdgcn_target "amdgcn-amd-amdhsa--gfx950"')
    L.append(".text")
    L.append(f".globl {NAME}_kernel")
    L.append(".p2align 8")
    L.append(f".type {NAME}_kernel,@function")
    L.append(f"{NAME}_kernel:")
    e = g.e
    e("s_cmp_ge_u32 s2, 256")
    e("s_cbranch_scc1 L_end")
    if a.stamps:
        e("s_memrealtime s[60:61]")
    e("s_load_dwordx16 s[4:19], s[0:1], 0")
    e("v_readfirstlane_b32 s3, v0")
    e("v_and_b32 v0, 63, v0")
    e("v_and_b32 v10, 15, v0")
    e("v_lshrrev_b32 v11, 4, v0")
    if M_ == 1:
        e(f"v_lshlrev_b32 v9, 11, v11")
    elif M_ == 4:
        e(f"v_lshlrev_b32 v9, {LS}, v11")
    else:
        e(f"v_lshrrev_b32 v9, 1, v11")
        e(f"v_lshlrev_b32 v9, {LS}, v9")
        e(f"v_and_b32 v12, 1, v11")
        e(f"v_lshl_add_u32 v9, v12, 11, v9")
    e(f"v_lshl_add_u32 v{V_KV}, v10, 4, v9")
    e(f"v_lshrrev_b32 v9, 7, v9")
    e(f"v_lshl_add_u32 v{V_E}, v10, 12, v9")
    e(f"v_lshlrev_b32 v{V_L}, 4, v0")
    if a.f1 or a.f2:
        e(f"s_lshr_b32 s{S_OFF}, s2, 3")
        if a.f1 != 1:
            e(f"s_mul_i32 s{S_OFF}, s{S_OFF}, {a.f1}")
        if a.f2:
            e("s_and_b32 s41, s2, 7")
            e(f"s_mul_i32 s41, s41, {a.f2}")
            e(f"s_add_u32 s{S_OFF}, s{S_OFF}, s41")
        if M_ > 1:
            e(f"s_lshr_b32 s41, s{S_OFF}, {int(math.log2(gps))}")
            e(f"s_lshl_b32 s41, s41, {LS + int(math.log2(M_))}")
            e(f"s_and_b32 s{S_OFF}, s{S_OFF}, {gps - 1}")
            e(f"s_lshl_b32 s{S_OFF}, s{S_OFF}, {LU}")
            e(f"s_or_b32 s{S_OFF}, s{S_OFF}, s41")
        else:
            e(f"s_lshl_b32 s{S_OFF}, s{S_OFF}, {LU}")
        e(f"s_and_b32 s{S_OFF}, s{S_OFF}, {omask}")
    else:
        e(f"s_mov_b32 s{S_OFF}, 0")
    e(f"s_lshl_b32 s{S_HO}, s2, 19")
    e(f"s_mov_b32 s{S_D+2}, 0x80000")
    e(f"s_mov_b32 s{S_D+3}, 0x20000")
    e(f"s_mov_b32 s{S_EO}, s{S_OFF}")
    e(f"s_lshr_b32 s{S_EO7}, s{S_OFF}, 7")
    e(f"s_mov_b32 s{S_E+2}, 0x10000")
    e(f"s_mov_b32 s{S_E+3}, 0x20000")
    e(f"s_lshl_b32 s{S_QO}, s2, 10")
    e(f"s_mov_b32 s{S_O+2}, 0x400")
    e(f"s_mov_b32 s{S_O+3}, 0x20000")
    if a.fb:
        e(f"s_mov_b32 s{S_B+2}, 0")
        e(f"s_mov_b32 s{S_B+3}, 0x20000")
        e("s_getreg_b32 s73, hwreg(HW_REG_HW_ID, 8, 4)")
        e("s_getreg_b32 s74, hwreg(HW_REG_HW_ID, 13, 2)")
        e("s_lshl_b32 s74, s74, 4")
        e("s_add_u32 s73, s73, s74")
        e("s_lshl_b32 s73, s73, 2")
        e(f"v_mov_b32 v{V_SLOT}, 0x1000")
        e(f"v_writelane_b32 v{V_SLOT}, s73, 0")
        e(f"v_lshlrev_b32 v{V_L4}, 2, v0")
    e("s_cmp_ge_u32 s3, 64")
    e("s_cbranch_scc1 L_helper")
    e("s_waitcnt lgkmcnt(0)")
    def stamp():
        e("s_waitcnt lgkmcnt(0)")
        e(f"v_writelane_b32 v{V_ST}, s60, m0")
        e("s_memrealtime s[60:61]")
        e("s_add_u32 m0, m0, 1")
    if a.stamps:
        e(f"v_mov_b32 v{V_ST}, 0")
        e("s_mov_b32 m0, 0")
        e("s_nop 3")
        stamp()
    e(f"s_add_u32 s{S_D}, s6, s{S_HO}")
    e(f"s_addc_u32 s{S_D+1}, s7, 0")

    mode = {"m": "pro"}
    def nextoff(r):
        if skip:
            e(f"s_or_b32 s{r}, s{r}, {skip}")
        e(f"s_add_u32 s{r}, s{r}, {U_}")
        e(f"s_and_b32 s{r}, s{r}, {omask}")
    def issue_row(n):
        if n % 32 == 0 and n > 0:
            if mode["m"] == "K":
                e(f"s_cmp_eq_u32 s{S_CNT}, 15")
                e(f"s_cselect_b64 s[{S_D}:{S_D+1}], s[{S_VB}:{S_VB+1}], s[{S_D}:{S_D+1}]")
            elif mode["m"] == "V":
                e(f"s_cmp_eq_u32 s{S_CNT}, 31")
                e(f"s_cselect_b32 s{S_D+2}, 0, s{S_D+2}")
        t, i = n // 8, n % 8
        if i == 0 and n > 0:
            nextoff(S_OFF)
        off = f" offset:{i*256}" if i else ""
        g.vm(f"buffer_load_dwordx4 {vr(V_BUF+(n%RS)*4,4)}, v{V_KV}, s[{S_D}:{S_D+3}], s{S_OFF} offen{off}{pol}", ("r", n))
    def issue_e(t, dst, track=True):
        if t % 4 == 0 and t > 0:
            if mode["m"] == "K":
                e(f"s_cmp_eq_u32 s{S_CNT}, 14")
                e(f"s_cselect_b64 s[{S_E}:{S_E+1}], s[12:13], s[{S_E}:{S_E+1}]")
            elif mode["m"] == "V":
                e(f"s_cmp_eq_u32 s{S_CNT}, 30")
                e(f"s_cselect_b32 s{S_E+2}, 0, s{S_E+2}")
        if t > 0:
            nextoff(S_EO)
            e(f"s_lshr_b32 s{S_EO7}, s{S_EO}, 7")
        ins = f"buffer_load_dwordx4 {dst}, v{V_E}, s[{S_E}:{S_E+3}], s{S_EO7} offen"
        if track:
            g.vm(ins, ("e", t))
        else:
            e(ins)

    e(f"s_mov_b32 s{S_E}, s10")
    e(f"s_mov_b32 s{S_E+1}, s11")
    issue_e(0, ar(A_E, 4))
    issue_e(1, ar(A_E + 4, 4))
    for t in range(-4, 0):
        for u in range(4):
            for k in range(2):
                n = t * 8 + 2 * u + W + k
                if n >= 0:
                    issue_row(n)
            if u == 0:
                issue_e(t + 6, vr(V_ES + ((t + 6) % 4) * 4, 4))
    if a.fb:
        e(f"s_mov_b32 s{S_B}, s16")
        e(f"s_mov_b32 s{S_B+1}, s17")
        e(f"v_mov_b32 v{V_FBV}, 1")
        g.vm(f"buffer_load_dword v{V_FBP}, v{V_L4}, s[{S_B}:{S_B+3}], 0 offen nt", "fb")
        g.vm(f"buffer_store_dword v{V_FBV}, v{V_SLOT}, s[{S_B}:{S_B+3}], 0 offen{fbs}", "fbs")
        e(f"s_mov_b32 s{S_B+2}, 256")
    e(f"s_add_u32 s{S_VB}, s8, s{S_HO}")
    e(f"s_addc_u32 s{S_VB+1}, s9, 0")
    e(f"s_add_u32 s{S_O}, s14, s{S_QO}")
    e(f"s_addc_u32 s{S_O+1}, s15, 0")
    e(f"s_mov_b32 s{S_SELLO}, 0x05040100")
    e(f"s_mov_b32 s{S_SELHI}, 0x07060302")
    e(f"s_mov_b32 s{S_CNT}, 0")
    e(f"v_lshlrev_b32 v4, 3, v0")
    if a.wt:
        e(f"s_mov_b64 vcc, {0 if a.rx0 else -1}")
    for i in range(32):
        e(f"v_mov_b32 v{V_T + 32 + i}, 0")
    for i in range(4):
        e(f"v_accvgpr_write_b32 a{A_E + 12 + i}, 0")
    for i in range(32):
        e(f"v_accvgpr_write_b32 a{A_K + i}, 0")
    for i in range(32):
        e(f"v_mov_b32 v{V_AV + i}, 0")

    def mfma(t, jj):
        T = vr(V_T + (t % 2) * 32 + jj * 4, 4)
        E = ar(A_E + (t % 4) * 4, 4)
        if t < G:
            e(f"v_mfma_f32_16x16x32_bf16 {ar(A_K+jj*4,4)}, {T}, {E}, {ar(A_K+jj*4,4)}")
        else:
            e(f"v_mfma_f32_16x16x32_bf16 {vr(V_AV+jj*4,4)}, {E}, {T}, {vr(V_AV+jj*4,4)}")

    def step(t, peeled=False):
        g.c(f"--- step {t % 4}")
        for u in range(4):
            n0 = t * 8 + 2 * u
            if a.wt:
                idx = g.q.index(("r", n0 + W - a.wt + 1))
                nt = len(g.q) - 1 - idx
                lb = f"L_rx{mode['m']}_{t%4}_{u}"
                e(f"s_cbranch_vccz {lb}")
                e(f"s_waitcnt vmcnt({nt})")
                g.lab(lb)
            g.wait_tag(("r", n0 + 1))
            issue_row(n0 + W)
            issue_row(n0 + W + 1)
            if u == 0:
                assert ("e", t + 2) not in g.q
                s = (t + 2) % 4
                for i in range(4):
                    e(f"v_accvgpr_write_b32 a{A_E + s*4 + i}, v{V_ES + s*4 + i}")
                issue_e(t + 6, vr(V_ES + s * 4, 4))
            r0 = V_BUF + (n0 % RS) * 4
            r1 = V_BUF + ((n0 + 1) % RS) * 4
            for jj in range(8):
                tt, h = jj // 2, jj % 2
                sel = S_SELHI if h else S_SELLO
                e(f"v_perm_b32 v{V_T + (t%2)*32 + jj*4 + u}, v{r1 + tt}, v{r0 + tt}, s{sel}")
                if jj in (3, 7):
                    mfma(t - 1, 2 * u + (1 if jj == 7 else 0))
            if peeled and u >= 1:
                for jj in (2 * u - 2, 2 * u - 1):
                    e(f"ds_write_b128 v{V_L}, {ar(A_K+jj*4,4)} offset:{L_KP + jj*1024}")
        if peeled:
            e("s_nop 6")
            for jj in (6, 7):
                e(f"ds_write_b128 v{V_L}, {ar(A_K+jj*4,4)} offset:{L_KP + jj*1024}")

    def fbstep():
        assert "fb" not in g.q
        e(f"v_cmp_ge_u32 s[74:75], v{V_FBP}, v{V_FBV}")
        e(f"v_add_u32 v{V_FBV}, 1, v{V_FBV}")
        g.vm(f"buffer_load_dword v{V_FBP}, v{V_L4}, s[{S_B}:{S_B+3}], 0 offen nt", "fb")
        e(f"s_bcnt1_i32_b64 s73, s[74:75]")
        g.vm(f"buffer_store_dword v{V_FBV}, v{V_SLOT}, s[{S_B}:{S_B+3}], 0 offen{fbs}", "fbs")
        e(f"s_cmp_ge_u32 s73, {a.thr}")
        e(f"s_cselect_b64 vcc, 0, -1")

    def body(t0, midlabel=None):
        for t in range(t0, t0 + 4):
            if midlabel and t == t0 + 1:
                g.lab(midlabel)
            step(t)
        if a.fb:
            fbstep()
        if a.stamps:
            stamp()

    def loop(label, t0, m, last, midlabel=None):
        mode["m"] = m
        g.lab(label)
        start = len(L)
        body(t0, midlabel)
        txt0 = L[start:]
        del L[start:]
        body(t0 + 4, midlabel)
        assert txt0 == L[start:], "loop body not uniform"
        e(f"s_add_u32 s{S_CNT}, s{S_CNT}, 1")
        if a.wt and not a.fb:
            e(f"s_cmp_ge_u32 s{S_CNT}, {a.rxk if m == 'K' else a.rxv}")
            e(f"s_cselect_b64 vcc, 0, -1")
        if a.wt and a.fb and m == "V":
            e(f"s_cmp_ge_u32 s{S_CNT}, {a.rxv}")
            e(f"s_cselect_b64 vcc, 0, vcc")
            e(f"s_cmp_ge_u32 s{S_CNT}, {a.fbend}")
            e(f"s_cselect_b32 s{S_B+2}, 0, s{S_B+2}")
        e(f"s_cmp_lt_u32 s{S_CNT}, {last}")
        e(f"s_cbranch_scc1 {label}")

    def retag(d):
        return [(("r", x[1] + d * 8) if x[0] == "r" else ("e", x[1] + d)) if isinstance(x, tuple) else x for x in g.q]

    L.append("; HOPK")
    loop("L_k", 0, "K", 16)
    L.append("; HOPV")
    g.q = retag(64 - 8)
    qsave = list(g.q)
    mode["m"] = "Vf"
    if a.wt and not a.fb:
        e(f"s_mov_b64 vcc, {0 if a.rxv0 else -1}")
    step(64, peeled=True)
    e("s_waitcnt lgkmcnt(0)")
    e("s_barrier")
    e("s_branch L_v1")
    g.q = qsave
    g.q = retag(4)
    loop("L_v", 68, "V", 32, midlabel="L_v1")
    e("s_barrier")
    e(f"ds_read_b64 {vr(V_P,2)}, v4 offset:{L_P}")
    for jj in range(8):
        mfma(127, jj)
    e("s_waitcnt lgkmcnt(0)")
    KP = V_T
    O = V_BUF
    for jj in range(8):
        e(f"v_cvt_pk_bf16_f32 v{KP + jj*2}, v{V_AV + jj*4}, v{V_AV + jj*4 + 1}")
        e(f"v_cvt_pk_bf16_f32 v{KP + jj*2 + 1}, v{V_AV + jj*4 + 2}, v{V_AV + jj*4 + 3}")
        if jj >= 1:
            e(f"v_mfma_f32_16x16x16_bf16 {vr(V_AV + (jj-1)*4, 4)}, {vr(V_P,2)}, {vr(KP + (jj-1)*2, 2)}, 0")
    e("s_nop 1")
    e(f"v_mfma_f32_16x16x16_bf16 {vr(V_AV + 7*4, 4)}, {vr(V_P,2)}, {vr(KP + 7*2, 2)}, 0")
    X = V_T + 16
    for k in range(2):
        e(f"v_cvt_pk_bf16_f32 v{X + k}, v{V_AV + 2*k*4}, v{V_AV + (2*k+1)*4}")
    e("s_nop 0")
    e(f"v_cvt_pk_bf16_f32 v{X + 2}, v{V_AV + 4*4}, v{V_AV + 5*4}")
    e("s_nop 3")
    e(f"v_cvt_pk_bf16_f32 v{X + 3}, v{V_AV + 6*4}, v{V_AV + 7*4}")
    e(f"buffer_store_dwordx4 {vr(X,4)}, v{V_L}, s[{S_O}:{S_O+3}], 0 offen{spol}")
    L.append("; HOPEND")
    if a.diagx:
        e("s_getreg_b32 s64, hwreg(HW_REG_XCC_ID)")
        e("s_sub_u32 s64, s2, s64")
        e("s_and_b32 s64, s64, 7")
        e("s_mul_i32 s64, s64, 1000")
        e("s_memrealtime s[62:63]")
        e("s_waitcnt lgkmcnt(0)")
        g.lab("L_dspin")
        e("s_memrealtime s[66:67]")
        e("s_waitcnt lgkmcnt(0)")
        e("s_sub_u32 s65, s66, s62")
        e("s_cmp_lt_u32 s65, s64")
        e("s_cbranch_scc1 L_dspin")
    if a.stamps:
        e("s_waitcnt vmcnt(0)")
        stamp()
        stamp()
        e("s_getreg_b32 s64, hwreg(HW_REG_XCC_ID)")
        e("s_getreg_b32 s65, hwreg(HW_REG_HW_ID)")
        e(f"v_writelane_b32 v{V_ST}, s64, 62")
        e(f"v_writelane_b32 v{V_ST}, s65, 63")
        e("s_lshl_b32 s52, s2, 8")
        e("s_add_u32 s68, s18, s52")
        e("s_addc_u32 s69, s19, 0")
        e("s_mov_b32 s70, 256")
        e("s_mov_b32 s71, 0x20000")
        e("v_lshlrev_b32 v20, 2, v0")
        e(f"buffer_store_dword v{V_ST}, v20, s[68:71], 0 offen")
    e("s_endpgm")

    g.lab("L_helper")
    H_Q, H_KP, H_T, H_S = 16, 32, 48, 80
    hopk = a.hopk > 0
    hopv = a.hopv > 0
    e("s_waitcnt lgkmcnt(0)")
    e(f"s_add_u32 s{S_D}, s6, s{S_HO}")
    e(f"s_addc_u32 s{S_D+1}, s7, 0")
    e(f"s_mov_b32 s{S_E}, s10")
    e(f"s_mov_b32 s{S_E+1}, s11")
    e(f"s_add_u32 s{S_VB}, s8, s{S_HO}")
    e(f"s_addc_u32 s{S_VB+1}, s9, 0")
    e(f"s_add_u32 s{S_O}, s14, s{S_QO}")
    e(f"s_addc_u32 s{S_O+1}, s15, 0")
    if a.fb:
        e(f"s_mov_b32 s{S_B}, s16")
        e(f"s_mov_b32 s{S_B+1}, s17")
    if hopk:
        e("s_mov_b64 exec, 0")
        e("s_branch L_hk0")
        g.lab("L_hkdone")
        e("s_mov_b64 exec, -1")
    e(f"s_add_u32 s{S_Q}, s4, s{S_QO}")
    e(f"s_addc_u32 s{S_Q+1}, s5, 0")
    e(f"s_mov_b32 s{S_Q+2}, 0x400")
    e(f"s_mov_b32 s{S_Q+3}, 0x20000")
    e(f"v_lshrrev_b32 v14, 2, v10")
    e(f"v_lshlrev_b32 v14, 8, v14")
    e(f"v_lshl_add_u32 v14, v11, 6, v14")
    if a.fb:
        e(f"s_mov_b32 s{S_B+2}, 256")
        e(f"buffer_load_dword v12, v{V_L4}, s[{S_B}:{S_B+3}], 0 offen nt")
    for m in range(4):
        off = f" offset:{m*16}" if m else ""
        e(f"buffer_load_dwordx4 {vr(H_Q+m*4,4)}, v14, s[{S_Q}:{S_Q+3}], 0 offen{off}")
    if a.warm:
        e("v_mov_b32 v15, 0")
        if a.warm & 1: e(f"global_load_dword v12, v15, s[{S_VB}:{S_VB+1}]")
        if a.warm & 2: e(f"global_load_dword v12, v15, s[12:13]")
        if a.warm & 4: e(f"global_load_dword v12, v15, s[{S_O}:{S_O+1}]")
    if a.pf:
        e("s_lshr_b32 s54, s2, 3")
        e("s_and_b32 s55, s54, 15")
        e("s_lshl_b32 s55, s55, 12")
        e("s_cmp_lt_u32 s54, 16")
        e("s_cselect_b64 s[56:57], s[10:11], s[12:13]")
        e("s_mov_b32 s58, 0x10000")
        e("s_mov_b32 s59, 0x20000")
        e("v_lshlrev_b32 v15, 6, v0")
        e(f"buffer_load_dword v13, v15, s[56:59], s55 offen")
    e("s_mov_b32 s52, 0x3db504f3")
    e("s_mov_b32 s53, 0x3fb8aa3b")
    if hopv:
        e("s_mov_b64 exec, 0")
        e("s_branch L_hv0")
        g.lab("L_hvdone")
        e("s_mov_b64 exec, -1")
    e("s_waitcnt vmcnt(0)")
    e("s_barrier")
    for jj in range(8):
        e(f"ds_read_b128 {vr(H_T + jj*4, 4)}, v{V_L} offset:{L_KP + jj*1024}")
    for u in range(4):
        e(f"s_waitcnt lgkmcnt({6 - 2*u})")
        for m in range(4):
            e(f"v_cvt_pk_bf16_f32 v{H_KP + m*4 + u}, v{H_T + 2*u*4 + m}, v{H_T + (2*u+1)*4 + m}")
    e("s_nop 1")
    S = H_S; X = H_S + 4; M = H_S + 8
    for m in range(4):
        C = "0" if m == 0 else vr(S, 4)
        e(f"v_mfma_f32_16x16x32_bf16 {vr(S,4)}, {vr(H_KP+m*4,4)}, {vr(H_Q+m*4,4)}, {C}")
    e("s_nop 7")
    def rb(src):
        e(f"v_cvt_pk_bf16_f32 v{X}, v{src}, v{src+1}")
        e(f"v_cvt_pk_bf16_f32 v{X+1}, v{src+2}, v{src+3}")
        e(f"v_lshlrev_b32 v{src}, 16, v{X}")
        e(f"v_and_b32 v{src+1}, 0xffff0000, v{X}")
        e(f"v_lshlrev_b32 v{src+2}, 16, v{X+1}")
        e(f"v_and_b32 v{src+3}, 0xffff0000, v{X+1}")
    rb(S)
    for i in range(4):
        e(f"v_mul_f32 v{S+i}, s52, v{S+i}")
    rb(S)
    e(f"v_max_f32 v{M}, v{S}, v{S+1}")
    e(f"v_max3_f32 v{M}, v{S+2}, v{S+3}, v{M}")
    def xlane(op):
        e(f"v_mov_b32 v{M+1}, v{M}")
        e("s_nop 1")
        e(f"v_permlane32_swap_b32 v{M}, v{M+1}")
        e("s_nop 1")
        e(f"{op} v{M}, v{M}, v{M+1}")
        e(f"v_mov_b32 v{M+1}, v{M}")
        e("s_nop 1")
        e(f"v_permlane16_swap_b32 v{M}, v{M+1}")
        e("s_nop 1")
        e(f"{op} v{M}, v{M}, v{M+1}")
    xlane("v_max_f32")
    for i in range(4):
        e(f"v_sub_f32 v{S+i}, v{S+i}, v{M}")
    for i in range(4):
        e(f"v_mul_f32 v{S+i}, s53, v{S+i}")
    for i in range(4):
        e(f"v_exp_f32 v{S+i}, v{S+i}")
    e("s_nop 0")
    e(f"v_add_f32 v{M}, v{S}, v{S+1}")
    e(f"v_add_f32 v{M+2}, v{S+2}, v{S+3}")
    e(f"v_add_f32 v{M}, v{M}, v{M+2}")
    xlane("v_add_f32")
    e(f"v_rcp_f32 v{M}, v{M}")
    e("s_nop 0")
    for i in range(4):
        e(f"v_mul_f32 v{S+i}, v{S+i}, v{M}")
    e(f"v_cvt_pk_bf16_f32 v{V_P}, v{S}, v{S+1}")
    e(f"v_cvt_pk_bf16_f32 v{V_P+1}, v{S+2}, v{S+3}")
    e(f"v_lshrrev_b32 v12, 1, v{V_L}")
    e(f"ds_write_b64 v12, {vr(V_P,2)} offset:{L_P}")
    e("s_waitcnt lgkmcnt(0)")
    g.lab("L_end")
    e("s_endpgm")

    def add_hops(m0, m1, stride, pfx):
        i0 = L.index(m0); i1 = L.index(m1)
        out = []; cnt = stride; n = 0
        for ln in L[i0+1:i1]:
            isinst = ln.startswith("    ") and not ln.strip().startswith((";", "."))
            if isinst:
                if cnt >= stride:
                    out.append(f"L_{pfx}{n}:")
                    out.append(f"    s_cbranch_execz L_{pfx}{n+1}")
                    n += 1; cnt = 4
                cnt += isz(ln)
            out.append(ln)
        out = [x.replace(f"L_{pfx}{n}", f"L_{pfx}done") if x.endswith(f" L_{pfx}{n}") else x for x in out]
        L[i0+1:i1] = out
    if hopk:
        add_hops("; HOPK", "; HOPV", a.hopk, "hk")
    if hopv:
        add_hops("; HOPV", "; HOPEND", a.hopv, "hv")

    L.append('.section .rodata,"a"')
    L.append(".p2align 6")
    L.append(f".amdhsa_kernel {NAME}_kernel")
    L.append(f"  .amdhsa_next_free_vgpr {total}")
    L.append("  .amdhsa_next_free_sgpr 80")
    L.append(f"  .amdhsa_accum_offset {accum}")
    L.append("  .amdhsa_group_segment_fixed_size 0")
    L.append("  .amdhsa_kernarg_size 64")
    L.append("  .amdhsa_user_sgpr_count 2")
    L.append("  .amdhsa_user_sgpr_kernarg_segment_ptr 1")
    L.append("  .amdhsa_system_sgpr_workgroup_id_x 1")
    L.append(".end_amdhsa_kernel")
    return "\n".join(L) + "\n"

if __name__ == "__main__":
    p = argparse.ArgumentParser()
    p.add_argument("--w", type=int, default=20)
    p.add_argument("--wt", type=int, default=0)
    p.add_argument("--rxk", type=int, default=99)
    p.add_argument("--rxv", type=int, default=31)
    p.add_argument("--rx0", type=int, default=0)
    p.add_argument("--rxv0", type=int, default=0)
    p.add_argument("--m", type=int, default=1)
    p.add_argument("--ls", type=int, default=15)
    p.add_argument("--f1", type=int, default=0)
    p.add_argument("--f2", type=int, default=0)
    p.add_argument("--fb", type=int, default=0)
    p.add_argument("--fbend", type=int, default=30)
    p.add_argument("--fbs", default="")
    p.add_argument("--diagx", type=int, default=0)
    p.add_argument("--thr", type=int, default=16)
    p.add_argument("--hopk", type=int, default=0)
    p.add_argument("--hopv", type=int, default=0)
    p.add_argument("--warm", type=int, default=0)
    p.add_argument("--pf", type=int, default=0)
    p.add_argument("--pol", default="nt")
    p.add_argument("--spol", default="")
    p.add_argument("--minlds", type=int, default=90000)
    p.add_argument("--stamps", type=int, default=0)
    p.add_argument("-o", default="/dev/stdout")
    a = p.parse_args()
    open(a.o, "w").write(gen(a))
```

```python
import sys, argparse, math
from gen import Gen, vr, ar, NAME, HEADER

def isz(ln):
    t = ln.strip()
    op = t.split()[0]
    if op.startswith(("s_nop", "s_waitcnt", "s_cbranch", "s_branch", "s_barrier", "s_cmp", "s_cselect", "s_addc", "s_bcnt", "s_lshr", "s_lshl", "v_add_u32", "v_mov_b32")):
        return 4
    return 8

def gen(a):
    g = Gen(a)
    a.sa = (a.fb == 4)
    if a.sa:
        a.fb = 0
    W, RS, G = a.w, 32, 64
    assert W % 2 == 0 and W <= RS - 2
    pol = (" " + a.pol) if a.pol else ""
    spol = (" " + a.spol) if a.spol else ""
    V_KV, V_E, V_L = 1, 2, 3
    V_SLOT, V_L4, V_ST, V_P, V_FBP, V_FBV = 5, 6, 7, 8, 10, 11
    V_ES, V_T = 12, 28
    V_BUF = V_T + 64
    V_AV = V_BUF + RS * 4
    vend = V_AV + 32
    V_G, V_GOFF, V_GSLOT = vend, vend + 1, vend + 2
    if a.fb == 2:
        vend += 3
    A_K, A_E = 0, 32
    aend = 48
    accum = (vend + 3) // 4 * 4
    total = accum + aend
    fbs = (" " + a.fbs) if a.fbs else ""
    S_D, S_E, S_B, S_Q, S_O = 20, 24, 28, 32, 36
    S_OFF, S_EO, S_EO7 = 40, 42, 43
    S_SELLO, S_SELHI, S_CNT, S_HO, S_QO, S_VB = 44, 45, 46, 47, 48, 50
    L_KP, L_P = 0, 8192
    M_, LS = a.m, a.ls
    S_ = 1 << LS
    U_ = 8192 // M_
    LU = int(math.log2(U_))
    skip = (M_ * S_ - S_) if M_ > 1 else 0
    omask = 0x7ffff & ~skip & ~(U_ - 1)
    gps = S_ // U_ if M_ > 1 else 64

    L = g.L
    L.append(HEADER.rstrip("\n"))
    L.append(f"; @launch grid=({264 if a.fb == 3 else 256},1,1) block=(128,1,1) lds={max(a.minlds, 8704)}")
    L.append('.amdgcn_target "amdgcn-amd-amdhsa--gfx950"')
    L.append(".text")
    L.append(f".globl {NAME}_kernel")
    if a.pal:
        L.append(".p2align 12")
    L.append(".p2align 8")
    L.append(f".type {NAME}_kernel,@function")
    L.append(f"{NAME}_kernel:")
    e = g.e
    e("s_cmp_ge_u32 s2, 256")
    e(f"s_cbranch_scc1 {'L_coord' if a.fb == 3 else 'L_end'}")
    if a.stamps:
        e("s_memrealtime s[60:61]")
    e("s_load_dwordx16 s[4:19], s[0:1], 0")
    e("v_readfirstlane_b32 s3, v0")
    e("v_and_b32 v0, 63, v0")
    e("v_and_b32 v10, 15, v0")
    e("v_lshrrev_b32 v11, 4, v0")
    if M_ == 1:
        e(f"v_lshlrev_b32 v9, 11, v11")
    elif M_ == 4:
        e(f"v_lshlrev_b32 v9, {LS}, v11")
    else:
        e(f"v_lshrrev_b32 v9, 1, v11")
        e(f"v_lshlrev_b32 v9, {LS}, v9")
        e(f"v_and_b32 v12, 1, v11")
        e(f"v_lshl_add_u32 v9, v12, 11, v9")
    e(f"v_lshl_add_u32 v{V_KV}, v10, 4, v9")
    e(f"v_lshrrev_b32 v9, 7, v9")
    e(f"v_lshl_add_u32 v{V_E}, v10, 12, v9")
    e(f"v_lshlrev_b32 v{V_L}, 4, v0")
    if a.f1 or a.f2:
        e(f"s_lshr_b32 s{S_OFF}, s2, 3")
        if a.f1 != 1:
            e(f"s_mul_i32 s{S_OFF}, s{S_OFF}, {a.f1}")
        if a.f2:
            e("s_and_b32 s41, s2, 7")
            e(f"s_mul_i32 s41, s41, {a.f2}")
            e(f"s_add_u32 s{S_OFF}, s{S_OFF}, s41")
        if M_ > 1:
            e(f"s_lshr_b32 s41, s{S_OFF}, {int(math.log2(gps))}")
            e(f"s_lshl_b32 s41, s41, {LS + int(math.log2(M_))}")
            e(f"s_and_b32 s{S_OFF}, s{S_OFF}, {gps - 1}")
            e(f"s_lshl_b32 s{S_OFF}, s{S_OFF}, {LU}")
            e(f"s_or_b32 s{S_OFF}, s{S_OFF}, s41")
        else:
            e(f"s_lshl_b32 s{S_OFF}, s{S_OFF}, {LU}")
        e(f"s_and_b32 s{S_OFF}, s{S_OFF}, {omask}")
    else:
        e(f"s_mov_b32 s{S_OFF}, 0")
    e(f"s_lshl_b32 s{S_HO}, s2, 19")
    e(f"s_mov_b32 s{S_D+2}, 0x80000")
    e(f"s_mov_b32 s{S_D+3}, 0x20000")
    e(f"s_mov_b32 s{S_EO}, s{S_OFF}")
    e(f"s_lshr_b32 s{S_EO7}, s{S_OFF}, 7")
    e(f"s_mov_b32 s{S_E+2}, 0x10000")
    e(f"s_mov_b32 s{S_E+3}, 0x20000")
    e(f"s_lshl_b32 s{S_QO}, s2, 10")
    e(f"s_mov_b32 s{S_O+2}, 0x400")
    e(f"s_mov_b32 s{S_O+3}, 0x20000")
    if a.fb:
        e(f"s_mov_b32 s{S_B+2}, 0")
        e(f"s_mov_b32 s{S_B+3}, 0x20000")
        if a.fb < 5:
            e("s_getreg_b32 s73, hwreg(HW_REG_HW_ID, 8, 4)")
            e("s_getreg_b32 s74, hwreg(HW_REG_HW_ID, 13, 2)")
            e("s_lshl_b32 s74, s74, 4")
            e("s_add_u32 s73, s73, s74")
        if a.fb == 6:
            e("s_and_b32 s73, s2, 7")
            e("s_lshl_b32 s73, s73, 5")
            e("s_lshr_b32 s74, s2, 3")
            e("s_movk_i32 s77, 0x1000")
            e("s_add_u32 s75, s73, s74")
            e(f"v_mov_b32 v{V_SLOT}, s77")
            e(f"v_writelane_b32 v{V_SLOT}, s75, 0")
            e(f"v_add_u32 v{V_L4}, s73, v0")
            e(f"v_cmp_gt_u32 vcc, 32, v0")
            e(f"v_mov_b32 v9, s77")
            e("s_mov_b32 s84, 0")
            e(f"v_cndmask_b32 v{V_L4}, v9, v{V_L4}, vcc")
            e("s_mov_b32 s82, 4")
            e("s_mov_b32 s83, 0")
        elif a.fb == 5:
            e("s_and_b32 s73, s2, 7")
            e(f"s_mul_i32 s73, s73, {a.sec}")
            e("s_lshr_b32 s74, s2, 3")
            e("s_movk_i32 s77, 0x1000")
            e("s_add_u32 s75, s73, s74")
            e(f"s_cmp_lt_u32 s74, {a.sec}")
            e("s_cselect_b32 s75, s75, s77")
            e(f"v_mov_b32 v{V_SLOT}, s77")
            e(f"v_writelane_b32 v{V_SLOT}, s75, 0")
            e(f"v_add_u32 v{V_L4}, s73, v0")
            e(f"v_cmp_gt_u32 vcc, {a.sec}, v0")
            e(f"v_mov_b32 v9, s77")
            e("s_nop 0")
            e(f"v_cndmask_b32 v{V_L4}, v9, v{V_L4}, vcc")
        elif a.fb == 1:
            e("s_lshl_b32 s73, s73, 2")
            e(f"v_mov_b32 v{V_SLOT}, 0x1000")
            e(f"v_writelane_b32 v{V_SLOT}, s73, 0")
            e(f"v_lshlrev_b32 v{V_L4}, 2, v0")
        else:
            e("s_lshl_b32 s73, s73, 1")
            e(f"v_mov_b32 v{V_SLOT}, 0x1000")
            e(f"v_writelane_b32 v{V_SLOT}, s73, 0")
            e(f"v_lshlrev_b32 v{V_L4}, 1, v0")
        if a.fb == 2:
            e("s_getreg_b32 s74, hwreg(HW_REG_XCC_ID, 0, 3)")
            e("s_lshl_b32 s74, s74, 2")
            e("s_add_u32 s74, s74, 128")
            e("s_movk_i32 s77, 0x1000")
            e("s_cmp_lt_u32 s2, 8")
            e("s_cselect_b32 s74, s74, s77")
            e("s_cselect_b32 s75, 30, s77")
            e("s_cselect_b32 s76, 128, s77")
            e(f"v_writelane_b32 v{V_SLOT}, s75, 15")
            e(f"v_mov_b32 v{V_GSLOT}, 0x1000")
            e(f"v_writelane_b32 v{V_GSLOT}, s74, 0")
            e(f"v_lshl_add_u32 v{V_GOFF}, v0, 2, s76")
            e(f"v_cmp_gt_u32 vcc, 8, v0")
            e(f"v_mov_b32 v9, 0x1000")
            e("s_nop 0")
            e(f"v_cndmask_b32 v{V_GOFF}, v9, v{V_GOFF}, vcc")
    e("s_cmp_ge_u32 s3, 64")
    e("s_cbranch_scc1 L_helper")
    e("s_waitcnt lgkmcnt(0)")
    def stamp():
        e("s_waitcnt lgkmcnt(0)")
        e(f"v_writelane_b32 v{V_ST}, s60, m0")
        e("s_memrealtime s[60:61]")
        e("s_add_u32 m0, m0, 1")
    if a.stamps:
        e(f"v_mov_b32 v{V_ST}, 0")
        e("s_mov_b32 m0, 0")
        e("s_mov_b32 s56, 0")
        e("s_nop 3")
        stamp()
    e(f"s_add_u32 s{S_D}, s6, s{S_HO}")
    e(f"s_addc_u32 s{S_D+1}, s7, 0")

    def fbmem(part):
        B = f"s[{S_B}:{S_B+3}]"
        if a.fb == 6:
            if part == 0:
                g.vm(f"buffer_load_ubyte v{V_FBP}, v{V_L4}, {B}, 0 offen nt", "fb")
            else:
                g.vm(f"buffer_store_byte v9, v{V_SLOT}, {B}, 0 offen{fbs}", "fbs")
        elif a.fb == 5:
            if part == 0:
                g.vm(f"buffer_load_ubyte v{V_FBP}, v{V_L4}, {B}, 0 offen nt", "fb")
            else:
                g.vm(f"buffer_store_byte v{V_FBV}, v{V_SLOT}, {B}, 0 offen{fbs}", "fbs")
        elif a.fb == 1:
            if part == 0:
                g.vm(f"buffer_load_dword v{V_FBP}, v{V_L4}, {B}, 0 offen nt", "fb")
            else:
                g.vm(f"buffer_store_dword v{V_FBV}, v{V_SLOT}, {B}, 0 offen{fbs}", "fbs")
        else:
            if part == 0:
                g.vm(f"buffer_load_sshort v{V_FBP}, v{V_L4}, {B}, 0 offen nt", "fb")
                if a.fb == 2:
                    g.vm(f"buffer_load_dword v{V_G}, v{V_GOFF}, {B}, 0 offen sc1", "fb")
            else:
                g.vm(f"buffer_store_short v{V_FBV}, v{V_SLOT}, {B}, 0 offen{fbs}", "fbs")
                if a.fb == 2:
                    g.vm(f"buffer_store_dword v{V_FBV}, v{V_GSLOT}, {B}, 0 offen sc1", "fbs")
    mode = {"m": "pro"}
    def nextoff(r):
        if skip:
            e(f"s_or_b32 s{r}, s{r}, {skip}")
        e(f"s_add_u32 s{r}, s{r}, {U_}")
        e(f"s_and_b32 s{r}, s{r}, {omask}")
    def issue_row(n):
        if n % 32 == 0 and n > 0:
            if mode["m"] == "K":
                e(f"s_cmp_eq_u32 s{S_CNT}, 15")
                e(f"s_cselect_b64 s[{S_D}:{S_D+1}], s[{S_VB}:{S_VB+1}], s[{S_D}:{S_D+1}]")
            elif mode["m"] == "V":
                e(f"s_cmp_eq_u32 s{S_CNT}, 31")
                e(f"s_cselect_b32 s{S_D+2}, 0, s{S_D+2}")
        t, i = n // 8, n % 8
        if i == 0 and n > 0:
            nextoff(S_OFF)
        off = f" offset:{i*256}" if i else ""
        g.vm(f"buffer_load_dwordx4 {vr(V_BUF+(n%RS)*4,4)}, v{V_KV}, s[{S_D}:{S_D+3}], s{S_OFF} offen{off}{pol}", ("r", n))
    def issue_e(t, dst, track=True):
        if t % 4 == 0 and t > 0:
            if mode["m"] == "K":
                e(f"s_cmp_eq_u32 s{S_CNT}, 14")
                e(f"s_cselect_b64 s[{S_E}:{S_E+1}], s[12:13], s[{S_E}:{S_E+1}]")
            elif mode["m"] == "V":
                e(f"s_cmp_eq_u32 s{S_CNT}, 30")
                e(f"s_cselect_b32 s{S_E+2}, 0, s{S_E+2}")
        if t > 0:
            nextoff(S_EO)
            e(f"s_lshr_b32 s{S_EO7}, s{S_EO}, 7")
        ins = f"buffer_load_dwordx4 {dst}, v{V_E}, s[{S_E}:{S_E+3}], s{S_EO7} offen"
        if track:
            g.vm(ins, ("e", t))
        else:
            e(ins)

    e(f"s_mov_b32 s{S_E}, s10")
    e(f"s_mov_b32 s{S_E+1}, s11")
    issue_e(0, ar(A_E, 4))
    issue_e(1, ar(A_E + 4, 4))
    for t in range(-4, 0):
        for u in range(4):
            for k in range(2):
                n = t * 8 + 2 * u + W + k
                if n >= 0:
                    issue_row(n)
            if u == 0:
                issue_e(t + 6, vr(V_ES + ((t + 6) % 4) * 4, 4))
    if a.fb:
        e(f"s_mov_b32 s{S_B}, s16")
        e(f"s_mov_b32 s{S_B+1}, s17")
        e(f"v_mov_b32 v{V_FBV}, 1")
        fbmem(0); fbmem(1)
        e(f"s_mov_b32 s{S_B+2}, 256")
    e(f"s_add_u32 s{S_VB}, s8, s{S_HO}")
    e(f"s_addc_u32 s{S_VB+1}, s9, 0")
    e(f"s_add_u32 s{S_O}, s14, s{S_QO}")
    e(f"s_addc_u32 s{S_O+1}, s15, 0")
    e(f"s_mov_b32 s{S_SELLO}, 0x05040100")
    e(f"s_mov_b32 s{S_SELHI}, 0x07060302")
    e(f"s_mov_b32 s{S_CNT}, 0")
    e(f"v_lshlrev_b32 v4, 3, v0")
    if a.sa:
        e(f"s_mov_b32 s83, {a.per // 2}")
        e(f"s_mov_b32 s82, {128 // a.shards}")
        if a.shards == 2:
            e(f"s_bfe_u32 s84, s2, 0x10003")
            e(f"s_lshl_b32 s84, s84, 7")
        elif a.shards == 4:
            e(f"s_bfe_u32 s84, s2, 0x20003")
            e(f"s_lshl_b32 s84, s84, 6")
        else:
            e(f"s_mov_b32 s84, 0")
    if a.wt:
        e(f"s_mov_b64 vcc, {0 if a.rx0 else -1}")
    if a.mz:
        Z = V_T
        for i in range(4):
            e(f"v_mov_b32 v{Z + i}, 0")
        e("s_nop 1")
        e(f"v_mfma_f32_16x16x32_bf16 {ar(A_E + 12, 4)}, {vr(Z,4)}, {vr(Z,4)}, 0")
        for d in (vr(V_T + 32, 16), vr(V_T + 48, 16), ar(A_K, 16), ar(A_K + 16, 16), vr(V_AV, 16), vr(V_AV + 16, 16)):
            e(f"v_mfma_f32_32x32x16_bf16 {d}, {vr(Z,4)}, {vr(Z,4)}, 0")
        e("s_nop 7")
        e("s_nop 4")
    else:
        for i in range(32):
            e(f"v_mov_b32 v{V_T + 32 + i}, 0")
        for i in range(4):
            e(f"v_accvgpr_write_b32 a{A_E + 12 + i}, 0")
        for i in range(32):
            e(f"v_accvgpr_write_b32 a{A_K + i}, 0")
        for i in range(32):
            e(f"v_mov_b32 v{V_AV + i}, 0")
    if a.stamps == 2:
        stamp()

    def mfma(t, jj):
        T = vr(V_T + (t % 2) * 32 + jj * 4, 4)
        E = ar(A_E + (t % 4) * 4, 4)
        if t < G:
            e(f"v_mfma_f32_16x16x32_bf16 {ar(A_K+jj*4,4)}, {T}, {E}, {ar(A_K+jj*4,4)}")
        else:
            e(f"v_mfma_f32_16x16x32_bf16 {vr(V_AV+jj*4,4)}, {E}, {T}, {vr(V_AV+jj*4,4)}")

    def step(t, peeled=False):
        g.c(f"--- step {t % 4}")
        for u in range(4):
            n0 = t * 8 + 2 * u
            if a.wt:
                idx = g.q.index(("r", n0 + W - a.wt + 1))
                nt = len(g.q) - 1 - idx
                lb = f"L_rx{mode['m']}_{t%4}_{u}"
                e(f"s_cbranch_vccz {lb}")
                e(f"s_waitcnt vmcnt({nt})")
                g.lab(lb)
            g.wait_tag(("r", n0 + 1))
            issue_row(n0 + W)
            issue_row(n0 + W + 1)
            if u == 0:
                assert ("e", t + 2) not in g.q
                s = (t + 2) % 4
                for i in range(4):
                    e(f"v_accvgpr_write_b32 a{A_E + s*4 + i}, v{V_ES + s*4 + i}")
                issue_e(t + 6, vr(V_ES + s * 4, 4))
            r0 = V_BUF + (n0 % RS) * 4
            r1 = V_BUF + ((n0 + 1) % RS) * 4
            for jj in range(8):
                tt, h = jj // 2, jj % 2
                sel = S_SELHI if h else S_SELLO
                e(f"v_perm_b32 v{V_T + (t%2)*32 + jj*4 + u}, v{r1 + tt}, v{r0 + tt}, s{sel}")
                if jj in (3, 7):
                    mfma(t - 1, 2 * u + (1 if jj == 7 else 0))
            if a.stamps == 2:
                e("s_waitcnt lgkmcnt(0)")
                e(f"v_writelane_b32 v{V_ST}, s60, m0")
                e("s_memrealtime s[60:61]")
                e("s_add_u32 s56, s56, 1")
                e(f"s_sub_u32 s57, s56, {a.s0}")
                e("s_max_i32 s57, s57, 2")
                e("s_min_i32 s57, s57, 60")
                e("s_mov_b32 m0, s57")
            if peeled and u >= 1:
                for jj in (2 * u - 2, 2 * u - 1):
                    e(f"ds_write_b128 v{V_L}, {ar(A_K+jj*4,4)} offset:{L_KP + jj*1024}")
        if peeled:
            e("s_nop 6")
            for jj in (6, 7):
                e(f"ds_write_b128 v{V_L}, {ar(A_K+jj*4,4)} offset:{L_KP + jj*1024}")

    def fbstep():
        assert "fb" not in g.q
        if a.fb in (1, 5):
            e(f"v_cmp_ge_u32 s[74:75], v{V_FBP}, v{V_FBV}")
            e(f"v_add_u32 v{V_FBV}, 1, v{V_FBV}")
            fbmem(0)
            e(f"s_bcnt1_i32_b64 s73, s[74:75]")
            fbmem(1)
            e(f"s_cmp_ge_u32 s73, {a.thr}")
            e(f"s_cselect_b64 vcc, 0, -1")
        elif a.fb == 6:
            m = mode["m"]
            e(f"v_readlane_b32 s78, v{V_FBP}, 0")
            e(f"v_and_b32 v{V_FBP}, 31, v{V_FBP}")
            e(f"v_cmp_ge_u32 s[74:75], v{V_FBP}, v{V_FBV}")
            e(f"v_add_u32 v{V_FBV}, 1, v{V_FBV}")
            fbmem(0)
            e(f"s_and_b32 s85, s{S_CNT}, 1")
            e(f"s_lshr_b32 s86, s2, 3")
            e(f"s_or_b32 s85, s85, s86")
            e(f"s_cbranch_scc1 L_rep{m}")
            if m == "V":
                e(f"s_cmp_gt_u32 s{S_CNT}, {a.fbend}")
                e(f"s_cbranch_scc1 L_rep{m}")
            e("s_waitcnt lgkmcnt(0)")
            e("s_sub_i32 s84, s82, s83")
            e("s_max_i32 s84, s84, 0")
            e("s_min_i32 s84, s84, 7")
            e("s_add_i32 s84, s84, 4")
            e("s_and_b32 s84, s84, 7")
            e("s_lshl_b32 s84, s84, 5")
            e(f"s_lshl_b32 s83, s{S_CNT}, 2")
            e("s_mov_b32 s82, 1")
            e("s_atomic_add s82, s[18:19], 0x80000 glc")
            g.lab(f"L_rep{m}")
            e(f"v_or_b32 v9, s84, v{V_FBV}")
            e(f"s_bcnt1_i32_b64 s73, s[74:75]")
            e(f"s_bfe_i32 s78, s78, 0x30005")
            fbmem(1)
            e(f"s_mul_i32 s78, s78, {a.gain}")
            e(f"s_add_i32 s73, s73, s78")
            e(f"s_cmp_ge_i32 s73, {a.thr - a.gain // 2}")
            e(f"s_cselect_b64 vcc, 0, -1")
        elif a.fb == 3:
            e(f"v_cmp_ge_i32 s[74:75], v{V_FBP}, v{V_FBV}")
            e(f"v_readlane_b32 s78, v{V_FBP}, 15")
            e(f"v_add_u32 v{V_FBV}, 1, v{V_FBV}")
            fbmem(0)
            e(f"s_bitset0_b64 s[74:75], 15")
            e(f"s_bcnt1_i32_b64 s73, s[74:75]")
            fbmem(1)
            e(f"s_add_i32 s78, s78, {a.thr}")
            e(f"s_cmp_ge_i32 s73, s78")
            e(f"s_cselect_b64 vcc, 0, -1")
        else:
            e(f"v_cmp_ge_i32 s[74:75], v{V_FBP}, v{V_FBV}")
            e(f"v_cmp_ge_u32 s[76:77], v{V_G}, v{V_FBV}")
            e(f"v_readlane_b32 s78, v{V_FBP}, 15")
            e(f"v_add_u32 v{V_FBV}, 1, v{V_FBV}")
            fbmem(0)
            e(f"s_and_b32 s76, s76, 0xff")
            e(f"s_bcnt1_i32_b32 s76, s76")
            e(f"s_mul_i32 s76, s76, {-a.gain}")
            e(f"s_add_i32 s76, s76, {a.gain * 7 // 2}")
            e(f"v_writelane_b32 v{V_FBV}, s76, 15")
            e(f"s_bitset0_b64 s[74:75], 15")
            e(f"s_bcnt1_i32_b64 s73, s[74:75]")
            fbmem(1)
            e(f"s_add_i32 s78, s78, {a.thr}")
            e(f"s_cmp_ge_i32 s73, s78")
            e(f"s_cselect_b64 vcc, 0, -1")

    def body(t0, midlabel=None):
        for t in range(t0, t0 + 4):
            if midlabel and t == t0 + 1:
                g.lab(midlabel)
            step(t)
        if a.fb:
            fbstep()
        if a.stamps == 1:
            stamp()

    def loop(label, t0, m, last, midlabel=None):
        mode["m"] = m
        g.lab(label)
        start = len(L)
        body(t0, midlabel)
        txt0 = L[start:]
        del L[start:]
        body(t0 + 4, midlabel)
        assert txt0 == L[start:], "loop body not uniform"
        if a.sa:
            P = a.per
            e(f"s_and_b32 s85, s{S_CNT}, {P-1}")
            e(f"s_cmp_eq_u32 s85, {P-1}")
            e(f"s_cbranch_scc0 L_sc{m}")
            e("s_waitcnt lgkmcnt(0)")
            e(f"s_mul_i32 s83, s82, {a.lmul}")
            e(f"s_add_i32 s83, s83, {a.ladd}")
            e(f"s_ashr_i32 s83, s83, 8")
            g.lab(f"L_sc{m}")
            e(f"s_cmp_eq_u32 s85, 0")
            e(f"s_cbranch_scc0 L_si{m}")
            if m == "V":
                e(f"s_cmp_gt_u32 s{S_CNT}, {a.fbend}")
                e(f"s_cbranch_scc1 L_si{m}")
            e("s_mov_b32 s82, 1")
            e(f"s_lshl_b32 s86, s{S_CNT}, {2 - int(math.log2(P))}") if P < 4 else e(f"s_mov_b32 s86, s{S_CNT}")
            e(f"s_add_u32 s86, s86, s84")
            e("s_atomic_add s82, s[16:17], s86 glc")
            g.lab(f"L_si{m}")
            e(f"s_add_u32 s85, s85, 1")
            e(f"s_and_b32 s85, s85, {P-1}")
            e(f"s_cmp_lt_i32 s85, s83")
            e(f"s_cselect_b64 vcc, 0, -1")
        e(f"s_add_u32 s{S_CNT}, s{S_CNT}, 1")
        if a.sa and m == "V":
            e(f"s_cmp_ge_u32 s{S_CNT}, {a.rxv}")
            e(f"s_cselect_b64 vcc, 0, vcc")
        if a.wt and not a.fb and not a.sa:
            e(f"s_cmp_ge_u32 s{S_CNT}, {a.rxk if m == 'K' else a.rxv}")
            e(f"s_cselect_b64 vcc, 0, -1")
        if a.wt and a.fb and m == "V":
            e(f"s_cmp_ge_u32 s{S_CNT}, {a.fbend + 2}")
            e(f"s_cselect_b64 vcc, s[80:81], vcc")
            e(f"s_mov_b64 s[80:81], vcc")
            e(f"s_cmp_ge_u32 s{S_CNT}, {a.rxv}")
            e(f"s_cselect_b64 vcc, 0, vcc")
            e(f"s_cmp_ge_u32 s{S_CNT}, {a.fbend}")
            e(f"s_cselect_b32 s{S_B+2}, 0, s{S_B+2}")
        e(f"s_cmp_lt_u32 s{S_CNT}, {last}")
        e(f"s_cbranch_scc1 {label}")

    def retag(d):
        return [(("r", x[1] + d * 8) if x[0] == "r" else ("e", x[1] + d)) if isinstance(x, tuple) else x for x in g.q]

    L.append("; HOPK")
    loop("L_k", 0, "K", 16)
    L.append("; HOPV")
    g.q = retag(64 - 8)
    qsave = list(g.q)
    mode["m"] = "Vf"
    if a.wt and not a.fb and not a.sa:
        e(f"s_mov_b64 vcc, {0 if a.rxv0 else -1}")
    step(64, peeled=True)
    e("s_waitcnt lgkmcnt(0)")
    e("s_barrier")
    e("s_branch L_v1")
    g.q = qsave
    g.q = retag(4)
    loop("L_v", 68, "V", 32, midlabel="L_v1")
    e("s_barrier")
    e(f"ds_read_b64 {vr(V_P,2)}, v4 offset:{L_P}")
    for jj in range(8):
        mfma(127, jj)
    e("s_waitcnt lgkmcnt(0)")
    KP = V_T
    O = V_BUF
    for jj in range(8):
        e(f"v_cvt_pk_bf16_f32 v{KP + jj*2}, v{V_AV + jj*4}, v{V_AV + jj*4 + 1}")
        e(f"v_cvt_pk_bf16_f32 v{KP + jj*2 + 1}, v{V_AV + jj*4 + 2}, v{V_AV + jj*4 + 3}")
        if jj >= 1:
            e(f"v_mfma_f32_16x16x16_bf16 {vr(V_AV + (jj-1)*4, 4)}, {vr(V_P,2)}, {vr(KP + (jj-1)*2, 2)}, 0")
    e("s_nop 1")
    e(f"v_mfma_f32_16x16x16_bf16 {vr(V_AV + 7*4, 4)}, {vr(V_P,2)}, {vr(KP + 7*2, 2)}, 0")
    X = V_T + 16
    for k in range(2):
        e(f"v_cvt_pk_bf16_f32 v{X + k}, v{V_AV + 2*k*4}, v{V_AV + (2*k+1)*4}")
    e("s_nop 0")
    e(f"v_cvt_pk_bf16_f32 v{X + 2}, v{V_AV + 4*4}, v{V_AV + 5*4}")
    e("s_nop 3")
    e(f"v_cvt_pk_bf16_f32 v{X + 3}, v{V_AV + 6*4}, v{V_AV + 7*4}")
    e(f"buffer_store_dwordx4 {vr(X,4)}, v{V_L}, s[{S_O}:{S_O+3}], 0 offen{spol}")
    L.append("; HOPEND")
    if a.dumpptr:
        e("s_mov_b32 s68, s16")
        e("s_mov_b32 s69, s17")
        e("s_mov_b32 s70, 256")
        e("s_mov_b32 s71, 0x20000")
        for i in range(16):
            e(f"v_writelane_b32 v20, s{4+i}, {i}")
        e("v_lshlrev_b32 v21, 2, v0")
        e("v_cmp_gt_u32 vcc, 16, v0")
        e("s_and_saveexec_b64 s[64:65], vcc")
        e("buffer_store_dword v20, v21, s[68:71], 0 offen")
    if a.diagx:
        e("s_getreg_b32 s64, hwreg(HW_REG_XCC_ID)")
        e("s_sub_u32 s64, s2, s64")
        e("s_and_b32 s64, s64, 7")
        e("s_mul_i32 s64, s64, 1000")
        e("s_memrealtime s[62:63]")
        e("s_waitcnt lgkmcnt(0)")
        g.lab("L_dspin")
        e("s_memrealtime s[66:67]")
        e("s_waitcnt lgkmcnt(0)")
        e("s_sub_u32 s65, s66, s62")
        e("s_cmp_lt_u32 s65, s64")
        e("s_cbranch_scc1 L_dspin")
    if a.stamps:
        e("s_waitcnt vmcnt(0)")
        stamp()
        stamp()
        e("s_getreg_b32 s64, hwreg(HW_REG_XCC_ID)")
        e("s_getreg_b32 s65, hwreg(HW_REG_HW_ID)")
        e(f"v_writelane_b32 v{V_ST}, s64, 62")
        e(f"v_writelane_b32 v{V_ST}, s65, 63")
        e("s_lshl_b32 s52, s2, 8")
        e("s_add_u32 s68, s18, s52")
        e("s_addc_u32 s69, s19, 0")
        e("s_mov_b32 s70, 256")
        e("s_mov_b32 s71, 0x20000")
        e("v_lshlrev_b32 v20, 2, v0")
        e(f"buffer_store_dword v{V_ST}, v20, s[68:71], 0 offen")
    e("s_endpgm")

    g.lab("L_helper")
    H_Q, H_KP, H_T, H_S = 16, 32, 48, 80
    hopk = a.hopk > 0
    hopv = a.hopv > 0
    e("s_waitcnt lgkmcnt(0)")
    e(f"s_add_u32 s{S_D}, s6, s{S_HO}")
    e(f"s_addc_u32 s{S_D+1}, s7, 0")
    e(f"s_mov_b32 s{S_E}, s10")
    e(f"s_mov_b32 s{S_E+1}, s11")
    e(f"s_add_u32 s{S_VB}, s8, s{S_HO}")
    e(f"s_addc_u32 s{S_VB+1}, s9, 0")
    e(f"s_add_u32 s{S_O}, s14, s{S_QO}")
    e(f"s_addc_u32 s{S_O+1}, s15, 0")
    if a.fb:
        e(f"s_mov_b32 s{S_B}, s16")
        e(f"s_mov_b32 s{S_B+1}, s17")
    if a.fb == 6:
        e("s_cmp_lg_u32 s2, 0")
        e("s_cbranch_scc1 L_noclr")
        e("v_mov_b32 v12, 0x80000")
        e("v_mov_b32 v13, 0")
        e("s_mov_b64 exec, 1")
        e("global_store_dword v12, v13, s[18:19] sc0 sc1")
        e("s_mov_b64 exec, -1")
        g.lab("L_noclr")
    if hopk:
        e("s_mov_b64 exec, 0")
        e("s_branch L_hk0")
        g.lab("L_hkdone")
        e("s_mov_b64 exec, -1")
    e(f"s_add_u32 s{S_Q}, s4, s{S_QO}")
    e(f"s_addc_u32 s{S_Q+1}, s5, 0")
    e(f"s_mov_b32 s{S_Q+2}, 0x400")
    e(f"s_mov_b32 s{S_Q+3}, 0x20000")
    e(f"v_lshrrev_b32 v14, 2, v10")
    e(f"v_lshlrev_b32 v14, 8, v14")
    e(f"v_lshl_add_u32 v14, v11, 6, v14")
    if a.fb:
        e(f"s_mov_b32 s{S_B+2}, 256")
        e(f"buffer_load_ubyte v12, v{V_L4}, s[{S_B}:{S_B+3}], 0 offen nt")
    for m in range(4):
        off = f" offset:{m*16}" if m else ""
        e(f"buffer_load_dwordx4 {vr(H_Q+m*4,4)}, v14, s[{S_Q}:{S_Q+3}], 0 offen{off}")
    if a.warm:
        e("v_mov_b32 v15, 0")
        if a.warm & 1: e(f"global_load_dword v12, v15, s[{S_VB}:{S_VB+1}]")
        if a.warm & 2: e(f"global_load_dword v12, v15, s[12:13]")
        if a.warm & 4: e(f"global_load_dword v12, v15, s[{S_O}:{S_O+1}]")
    if a.pf:
        e("s_lshr_b32 s54, s2, 3")
        e("s_and_b32 s55, s54, 15")
        e("s_lshl_b32 s55, s55, 12")
        e("s_cmp_lt_u32 s54, 16")
        e("s_cselect_b64 s[56:57], s[10:11], s[12:13]")
        e("s_mov_b32 s58, 0x10000")
        e("s_mov_b32 s59, 0x20000")
        e("v_lshlrev_b32 v15, 6, v0")
        e(f"buffer_load_dword v13, v15, s[56:59], s55 offen")
    e("s_mov_b32 s52, 0x3db504f3")
    e("s_mov_b32 s53, 0x3fb8aa3b")
    if hopv:
        e("s_mov_b64 exec, 0")
        e("s_branch L_hv0")
        g.lab("L_hvdone")
        e("s_mov_b64 exec, -1")
    e("s_waitcnt vmcnt(0)")
    e("s_barrier")
    for jj in range(8):
        e(f"ds_read_b128 {vr(H_T + jj*4, 4)}, v{V_L} offset:{L_KP + jj*1024}")
    for u in range(4):
        e(f"s_waitcnt lgkmcnt({6 - 2*u})")
        for m in range(4):
            e(f"v_cvt_pk_bf16_f32 v{H_KP + m*4 + u}, v{H_T + 2*u*4 + m}, v{H_T + (2*u+1)*4 + m}")
    e("s_nop 1")
    S = H_S; X = H_S + 4; M = H_S + 8
    for m in range(4):
        C = "0" if m == 0 else vr(S, 4)
        e(f"v_mfma_f32_16x16x32_bf16 {vr(S,4)}, {vr(H_KP+m*4,4)}, {vr(H_Q+m*4,4)}, {C}")
    e("s_nop 7")
    def rb(src):
        e(f"v_cvt_pk_bf16_f32 v{X}, v{src}, v{src+1}")
        e(f"v_cvt_pk_bf16_f32 v{X+1}, v{src+2}, v{src+3}")
        e(f"v_lshlrev_b32 v{src}, 16, v{X}")
        e(f"v_and_b32 v{src+1}, 0xffff0000, v{X}")
        e(f"v_lshlrev_b32 v{src+2}, 16, v{X+1}")
        e(f"v_and_b32 v{src+3}, 0xffff0000, v{X+1}")
    rb(S)
    for i in range(4):
        e(f"v_mul_f32 v{S+i}, s52, v{S+i}")
    rb(S)
    e(f"v_max_f32 v{M}, v{S}, v{S+1}")
    e(f"v_max3_f32 v{M}, v{S+2}, v{S+3}, v{M}")
    def xlane(op):
        e(f"v_mov_b32 v{M+1}, v{M}")
        e("s_nop 1")
        e(f"v_permlane32_swap_b32 v{M}, v{M+1}")
        e("s_nop 1")
        e(f"{op} v{M}, v{M}, v{M+1}")
        e(f"v_mov_b32 v{M+1}, v{M}")
        e("s_nop 1")
        e(f"v_permlane16_swap_b32 v{M}, v{M+1}")
        e("s_nop 1")
        e(f"{op} v{M}, v{M}, v{M+1}")
    xlane("v_max_f32")
    for i in range(4):
        e(f"v_sub_f32 v{S+i}, v{S+i}, v{M}")
    for i in range(4):
        e(f"v_mul_f32 v{S+i}, s53, v{S+i}")
    for i in range(4):
        e(f"v_exp_f32 v{S+i}, v{S+i}")
    e("s_nop 0")
    e(f"v_add_f32 v{M}, v{S}, v{S+1}")
    e(f"v_add_f32 v{M+2}, v{S+2}, v{S+3}")
    e(f"v_add_f32 v{M}, v{M}, v{M+2}")
    xlane("v_add_f32")
    e(f"v_rcp_f32 v{M}, v{M}")
    e("s_nop 0")
    for i in range(4):
        e(f"v_mul_f32 v{S+i}, v{S+i}, v{M}")
    e(f"v_cvt_pk_bf16_f32 v{V_P}, v{S}, v{S+1}")
    e(f"v_cvt_pk_bf16_f32 v{V_P+1}, v{S+2}, v{S+3}")
    e(f"v_lshrrev_b32 v12, 1, v{V_L}")
    e(f"ds_write_b64 v12, {vr(V_P,2)} offset:{L_P}")
    e("s_waitcnt lgkmcnt(0)")
    g.lab("L_end")
    e("s_endpgm")
    if a.fb == 3:
        g.lab("L_coord")
        e(f"s_cmp_ge_u32 s2, {0 if a.cexit else 264}")
        e("s_cbranch_scc1 L_end")
        e("v_readfirstlane_b32 s3, v0")
        e("s_load_dwordx2 s[28:29], s[0:1], 48")
        e("s_cmp_ge_u32 s3, 64")
        e("s_cbranch_scc1 L_end")
        e("s_mov_b32 s30, 256")
        e("s_mov_b32 s31, 0x20000")
        e("s_getreg_b32 s4, hwreg(HW_REG_XCC_ID, 0, 3)")
        e("s_lshl_b32 s4, s4, 2")
        e("s_add_u32 s4, s4, 128")
        e("v_lshlrev_b32 v1, 1, v0")
        e("v_mov_b32 v2, 0x1000")
        e("v_writelane_b32 v2, s4, 0")
        e("v_mov_b32 v3, 0x1000")
        e("v_writelane_b32 v3, 30, 0")
        e("v_lshlrev_b32 v4, 2, v0")
        e("v_add_u32 v4, 128, v4")
        e(f"s_mov_b32 s5, {a.ck0}")
        e("s_mov_b32 s6, 0")
        e("s_waitcnt lgkmcnt(0)")
        g.lab("L_cpoll")
        e("buffer_load_sshort v5, v1, s[28:31], 0 offen nt")
        e("s_add_u32 s6, s6, 1")
        e("s_cmp_ge_u32 s6, 3000")
        e("s_cbranch_scc1 L_end")
        e("s_waitcnt vmcnt(0)")
        e("v_cmp_le_i32 s[8:9], s5, v5")
        e("s_nop 0")
        e("s_bitset0_b64 s[8:9], 15")
        e("s_bcnt1_i32_b64 s7, s[8:9]")
        e("s_cmp_ge_u32 s7, 16")
        e("s_cbranch_scc1 L_ccross")
        e(f"v_cmp_le_i32 vcc, {a.fbend + 1}, v5")
        e("s_nop 0")
        e("s_bitset0_b64 vcc, 15")
        e("s_cmp_lg_u64 vcc, 0")
        e("s_cbranch_scc1 L_end")
        e("s_sleep 1")
        e("s_branch L_cpoll")
        g.lab("L_ccross")
        if a.satom:
            e("s_lshl_b32 s10, s5, 2")
            e("s_add_u32 s10, s10, 128")
            e("s_mov_b32 s7, 1")
            e("s_atomic_add s7, s[28:29], s10 glc")
            e("s_waitcnt lgkmcnt(0)")
        else:
            e("v_mov_b32 v6, s5")
            e("buffer_load_dword v7, v4, s[28:31], 0 offen sc1")
            e("buffer_store_dword v6, v2, s[28:31], 0 offen sc1")
            e("s_waitcnt vmcnt(1)")
            e("v_cmp_le_u32 s[8:9], s5, v7")
            e("s_nop 0")
            e("s_bcnt1_i32_b64 s7, s[8:9]")
        e(f"s_mul_i32 s7, s7, {-a.gain}")
        e(f"s_add_i32 s7, s7, {a.gain * 7 // 2}")
        e("v_mov_b32 v8, s7")
        e("buffer_store_short v8, v3, s[28:31], 0 offen")
        e(f"s_add_u32 s5, s5, {a.ckstep}")
        e(f"s_cmp_le_u32 s5, {a.fbend}")
        e("s_cbranch_scc1 L_cpoll")
        e("s_endpgm")

    def add_hops(m0, m1, stride, pfx):
        i0 = L.index(m0); i1 = L.index(m1)
        out = []; cnt = stride; n = 0
        for ln in L[i0+1:i1]:
            isinst = ln.startswith("    ") and not ln.strip().startswith((";", "."))
            if isinst:
                if cnt >= stride:
                    out.append(f"L_{pfx}{n}:")
                    out.append(f"    s_cbranch_execz L_{pfx}{n+1}")
                    n += 1; cnt = 4
                cnt += isz(ln)
            out.append(ln)
        out = [x.replace(f"L_{pfx}{n}", f"L_{pfx}done") if x.endswith(f" L_{pfx}{n}") else x for x in out]
        L[i0+1:i1] = out
    if hopk:
        add_hops("; HOPK", "; HOPV", a.hopk, "hk")
    if hopv:
        add_hops("; HOPV", "; HOPEND", a.hopv, "hv")

    L.append('.section .rodata,"a"')
    L.append(".p2align 6")
    L.append(f".amdhsa_kernel {NAME}_kernel")
    L.append(f"  .amdhsa_next_free_vgpr {total}")
    L.append("  .amdhsa_next_free_sgpr 88")
    L.append(f"  .amdhsa_accum_offset {accum}")
    L.append("  .amdhsa_group_segment_fixed_size 0")
    L.append("  .amdhsa_kernarg_size 64")
    L.append("  .amdhsa_user_sgpr_count 2")
    L.append("  .amdhsa_user_sgpr_kernarg_segment_ptr 1")
    L.append("  .amdhsa_system_sgpr_workgroup_id_x 1")
    L.append(".end_amdhsa_kernel")
    return "\n".join(L) + "\n"

if __name__ == "__main__":
    p = argparse.ArgumentParser()
    p.add_argument("--w", type=int, default=20)
    p.add_argument("--wt", type=int, default=0)
    p.add_argument("--rxk", type=int, default=99)
    p.add_argument("--rxv", type=int, default=31)
    p.add_argument("--rx0", type=int, default=0)
    p.add_argument("--rxv0", type=int, default=0)
    p.add_argument("--m", type=int, default=1)
    p.add_argument("--ls", type=int, default=15)
    p.add_argument("--f1", type=int, default=0)
    p.add_argument("--f2", type=int, default=0)
    p.add_argument("--fb", type=int, default=0)
    p.add_argument("--fbend", type=int, default=30)
    p.add_argument("--fbs", default="")
    p.add_argument("--diagx", type=int, default=0)
    p.add_argument("--mz", type=int, default=0)
    p.add_argument("--s0", type=int, default=-2)
    p.add_argument("--pal", type=int, default=0)
    p.add_argument("--gain", type=int, default=4)
    p.add_argument("--ck0", type=int, default=3)
    p.add_argument("--ckstep", type=int, default=2)
    p.add_argument("--satom", type=int, default=1)
    p.add_argument("--cexit", type=int, default=0)
    p.add_argument("--per", type=int, default=4)
    p.add_argument("--shards", type=int, default=2)
    p.add_argument("--lmul", type=int, default=10)
    p.add_argument("--ladd", type=int, default=0)
    p.add_argument("--sec", type=int, default=32)
    p.add_argument("--dumpptr", type=int, default=0)
    p.add_argument("--thr", type=int, default=16)
    p.add_argument("--hopk", type=int, default=0)
    p.add_argument("--hopv", type=int, default=0)
    p.add_argument("--warm", type=int, default=0)
    p.add_argument("--pf", type=int, default=0)
    p.add_argument("--pol", default="nt")
    p.add_argument("--spol", default="")
    p.add_argument("--minlds", type=int, default=90000)
    p.add_argument("--stamps", type=int, default=0)
    p.add_argument("-o", default="/dev/stdout")
    a = p.parse_args()
    open(a.o, "w").write(gen(a))
```

```python
import sys, argparse, math
from gen import Gen, vr, ar, NAME, HEADER

def isz(ln):
    op = ln.strip().split()[0]
    if op.startswith(("s_nop", "s_waitcnt", "s_cbranch", "s_branch", "s_barrier", "s_cmp", "s_cselect", "s_addc", "s_bcnt", "s_lshr", "s_lshl", "v_add_u32", "v_mov_b32", "v_cmp")):
        return 4
    return 8

def gen(a):
    g = Gen(a)
    W, RS, G = a.w, 32, 64
    assert W % 2 == 0 and W <= RS - 2
    V_KV, V_E, V_L, V_L8 = 1, 2, 3, 4
    V_CA, V_ONE, V_ST, V_P, V_F, V_CW = 5, 6, 7, 8, 10, 11
    V_ES, V_T = 12, 28
    V_BUF = V_T + 64
    V_AV = V_BUF + RS * 4
    vend = V_AV + 32
    A_K, A_E = 0, 32
    aend = 48
    accum = (vend + 3) // 4 * 4
    total = accum + aend
    S_D, S_E, S_B, S_Q, S_O = 20, 24, 28, 32, 36
    S_EO, S_EO7 = 42, 43
    S_R = 52
    S_SELLO, S_SELHI, S_CNT, S_HO, S_QO, S_VB = 44, 45, 46, 47, 48, 50
    L_KP, L_P, L_C = 0, 8192, 8704
    M_, LS = a.m, a.ls
    S_ = 1 << LS
    U_ = 8192 // M_
    LU = int(math.log2(U_))
    skip = (M_ * S_ - S_) if M_ > 1 else 0
    omask = 0x7ffff & ~skip & ~(U_ - 1)
    gps = S_ // U_ if M_ > 1 else 64

    L = g.L
    L.append(HEADER.rstrip("\n"))
    L.append(f"; @launch grid=(256,1,1) block=(128,1,1) lds={max(a.minlds, 9024)}")
    L.append('.amdgcn_target "amdgcn-amd-amdhsa--gfx950"')
    L.append(".text")
    L.append(f".globl {NAME}_kernel")
    L.append(".p2align 12")
    L.append(".p2align 8")
    L.append(f".type {NAME}_kernel,@function")
    L.append(f"{NAME}_kernel:")
    e = g.e
    e("s_cmp_ge_u32 s2, 256")
    e("s_cbranch_scc1 L_end")
    if a.stamps:
        e("s_memrealtime s[60:61]")
    e("s_load_dwordx16 s[4:19], s[0:1], 0")
    e("v_readfirstlane_b32 s3, v0")
    e("v_and_b32 v0, 63, v0")
    e(f"v_mov_b32 v{V_CA}, {L_C}")
    e(f"v_mov_b32 v8, 0")
    e(f"v_mov_b32 v9, {0 if a.rx0 else 1}")
    e(f"ds_write_b64 v{V_CA}, v[8:9]")
    e("v_and_b32 v10, 15, v0")
    e("v_lshrrev_b32 v11, 4, v0")
    if M_ == 1:
        e(f"v_lshlrev_b32 v13, 11, v11")
    elif M_ == 4:
        e(f"v_lshlrev_b32 v13, {LS}, v11")
    else:
        e(f"v_lshrrev_b32 v13, 1, v11")
        e(f"v_lshlrev_b32 v13, {LS}, v13")
        e(f"v_and_b32 v12, 1, v11")
        e(f"v_lshl_add_u32 v13, v12, 11, v13")
    e(f"v_lshl_add_u32 v{V_KV}, v10, 4, v13")
    e(f"v_lshrrev_b32 v13, 7, v13")
    e(f"v_lshl_add_u32 v{V_E}, v10, 12, v13")
    e(f"v_lshlrev_b32 v{V_L}, 4, v0")
    e(f"s_lshr_b32 s{S_EO}, s2, 3")
    if a.f1 != 1:
        e(f"s_mul_i32 s{S_EO}, s{S_EO}, {a.f1}")
    if a.f2:
        e("s_and_b32 s41, s2, 7")
        e(f"s_mul_i32 s41, s41, {a.f2}")
        e(f"s_add_u32 s{S_EO}, s{S_EO}, s41")
    if M_ > 1:
        e(f"s_lshr_b32 s41, s{S_EO}, {int(math.log2(gps))}")
        e(f"s_lshl_b32 s41, s41, {LS + int(math.log2(M_))}")
        e(f"s_and_b32 s{S_EO}, s{S_EO}, {gps - 1}")
        e(f"s_lshl_b32 s{S_EO}, s{S_EO}, {LU}")
        e(f"s_or_b32 s{S_EO}, s{S_EO}, s41")
    else:
        e(f"s_lshl_b32 s{S_EO}, s{S_EO}, {LU}")
    e(f"s_and_b32 s{S_R}, s{S_EO}, {omask}")
    e(f"s_lshl_b32 s{S_HO}, s2, 19")
    e(f"s_mov_b32 s{S_D+2}, 0x80000")
    e(f"s_mov_b32 s{S_D+3}, 0x20000")
    e(f"s_lshr_b32 s{S_EO7}, s{S_R}, 7")
    e(f"s_mov_b32 s{S_E+2}, 0x10000")
    e(f"s_mov_b32 s{S_E+3}, 0x20000")
    e(f"s_lshl_b32 s{S_QO}, s2, 10")
    e(f"s_mov_b32 s{S_O+2}, 0x400")
    e(f"s_mov_b32 s{S_O+3}, 0x20000")
    e("s_cmp_ge_u32 s3, 64")
    e("s_waitcnt lgkmcnt(0)")
    e("s_barrier")
    e("s_cbranch_scc1 L_helper")
    def stamp():
        e("s_waitcnt lgkmcnt(0)")
        e(f"v_writelane_b32 v{V_ST}, s60, m0")
        e("s_memrealtime s[60:61]")
        e("s_add_u32 m0, m0, 1")
    if a.stamps:
        e(f"v_mov_b32 v{V_ST}, 0")
        e("s_mov_b32 m0, 0")
        e("s_nop 3")
        stamp()
    e(f"s_add_u32 s{S_D}, s6, s{S_HO}")
    e(f"s_addc_u32 s{S_D+1}, s7, 0")
    e(f"s_mov_b32 s{S_E}, s10")
    e(f"s_mov_b32 s{S_E+1}, s11")

    mode = {"m": "pro"}
    NR = 4
    def ring(t):
        return S_R + t % NR
    def mkoff(t):
        src, dst = ring(t - 1), ring(t)
        if skip:
            e(f"s_or_b32 s{dst}, s{src}, {skip}")
            e(f"s_add_u32 s{dst}, s{dst}, {U_}")
        else:
            e(f"s_add_u32 s{dst}, s{src}, {U_}")
        e(f"s_and_b32 s{dst}, s{dst}, {omask}")
        made["t"] = t
    made = {"t": 0}
    def issue_row(n):
        if n % 32 == 0 and n > 0:
            if mode["m"] == "K":
                e(f"s_cmp_eq_u32 s{S_CNT}, 15")
                e(f"s_cselect_b64 s[{S_D}:{S_D+1}], s[{S_VB}:{S_VB+1}], s[{S_D}:{S_D+1}]")
            elif mode["m"] == "V" and not a.plast:
                e(f"s_cmp_eq_u32 s{S_CNT}, 31")
                e(f"s_cselect_b32 s{S_D+2}, 0, s{S_D+2}")
        t, i = n // 8, n % 8
        assert made["t"] - NR < t <= made["t"], (t, made["t"])
        off = f" offset:{i*256}" if i else ""
        g.vm(f"buffer_load_dwordx4 {vr(V_BUF+(n%RS)*4,4)}, v{V_KV}, s[{S_D}:{S_D+3}], s{ring(t)} offen{off} nt", ("r", n))
    def issue_e(t, dst):
        if t % 4 == 0 and t > 0:
            if mode["m"] == "K":
                e(f"s_cmp_eq_u32 s{S_CNT}, 14")
                e(f"s_cselect_b64 s[{S_E}:{S_E+1}], s[12:13], s[{S_E}:{S_E+1}]")
            elif mode["m"] == "V" and not a.plast:
                e(f"s_cmp_eq_u32 s{S_CNT}, 30")
                e(f"s_cselect_b32 s{S_E+2}, 0, s{S_E+2}")
        if t > 0:
            mkoff(t)
            e(f"s_lshr_b32 s{S_EO7}, s{ring(t)}, 7")
        g.vm(f"buffer_load_dwordx4 {dst}, v{V_E}, s[{S_E}:{S_E+3}], s{S_EO7} offen", ("e", t))

    if a.swarm:
        e(f"s_load_dword s80, s[{S_E}:{S_E+1}], 0")
        e(f"s_load_dword s81, s[{S_D}:{S_D+1}], 0")
    front = [(0, ar(A_E, 4)), (1, ar(A_E + 4, 4))]
    seq = []
    for t in range(-4, 0):
        for u in range(4):
            for k in range(2):
                n = t * 8 + 2 * u + W + k
                if n >= 0:
                    seq.append(("r", n))
            if u == a.eu:
                x = (t + 6, vr(V_ES + ((t + 6) % 4) * 4, 4))
                if seq:
                    seq.append(("e", x))
                else:
                    front.append(x)
    if a.kfirst:
        assert a.kfirst <= 2 * a.eu + 1 or len(front) == 2
        assert all(x[0] == "r" for x in seq[:a.kfirst])
    def emit_front():
        for x in front:
            issue_e(*x)
            if a.kfirst:
                g.q.pop()
    if not a.kfirst:
        emit_front()
    for x in seq:
        if x[0] == "r":
            issue_row(x[1])
            if a.kfirst and x[1] == a.kfirst - 1:
                emit_front()
        else:
            issue_e(*x[1])
    e(f"s_add_u32 s{S_VB}, s8, s{S_HO}")
    e(f"s_addc_u32 s{S_VB+1}, s9, 0")
    e(f"s_add_u32 s{S_O}, s14, s{S_QO}")
    e(f"s_addc_u32 s{S_O+1}, s15, 0")
    e(f"s_mov_b32 s{S_SELLO}, 0x05040100")
    e(f"s_mov_b32 s{S_SELHI}, 0x07060302")
    e(f"s_mov_b32 s{S_CNT}, 0")
    e(f"s_movk_i32 s41, {L_C}")
    e(f"v_lshlrev_b32 v{V_L8}, 3, v0")
    e(f"v_mov_b32 v{V_ONE}, 1")
    e(f"v_lshl_add_u32 v{V_CW}, v0, 2, v{V_CA}")
    e(f"v_add_u32 v{V_CW}, 4, v{V_CW}")
    e(f"v_writelane_b32 v{V_CW}, s41, 0")
    e(f"s_mov_b64 vcc, {0 if a.rx0 else -1}")
    Z = V_T
    for i in range(4):
        e(f"v_mov_b32 v{Z + i}, 0")
    e("s_nop 1")
    e(f"v_mfma_f32_16x16x32_bf16 {ar(A_E + 12, 4)}, {vr(Z,4)}, {vr(Z,4)}, 0")
    for d in (vr(V_T + 32, 16), vr(V_T + 48, 16), ar(A_K, 16), ar(A_K + 16, 16), vr(V_AV, 16), vr(V_AV + 16, 16)):
        e(f"v_mfma_f32_32x32x16_bf16 {d}, {vr(Z,4)}, {vr(Z,4)}, 0")
    e("s_nop 7")
    e("s_nop 4")

    def mfma(t, jj):
        T = vr(V_T + (t % 2) * 32 + jj * 4, 4)
        E = ar(A_E + (t % 4) * 4, 4)
        if t < G:
            e(f"v_mfma_f32_16x16x32_bf16 {ar(A_K+jj*4,4)}, {T}, {E}, {ar(A_K+jj*4,4)}")
        else:
            e(f"v_mfma_f32_16x16x32_bf16 {vr(V_AV+jj*4,4)}, {E}, {T}, {vr(V_AV+jj*4,4)}")

    def step(t, peeled=False):
        g.c(f"--- step {t % 4}")
        for u in range(4):
            n0 = t * 8 + 2 * u
            if u % a.tev == 0:
                idx = g.q.index(("r", n0 + W - a.wt + 1))
                nt = len(g.q) - 1 - idx
                lb = f"L_rx{mode['m']}_{t%4}_{u}"
                e(f"s_cbranch_vccz {lb}")
                e(f"s_waitcnt vmcnt({nt})")
                g.lab(lb)
            g.wait_tag(("r", n0 + 1))
            issue_row(n0 + W)
            issue_row(n0 + W + 1)
            if u == a.eu:
                assert ("e", t + 2) not in g.q
                s = (t + 2) % 4
                for i in range(4):
                    e(f"v_accvgpr_write_b32 a{A_E + s*4 + i}, v{V_ES + s*4 + i}")
                issue_e(t + 6, vr(V_ES + s * 4, 4))
            r0 = V_BUF + (n0 % RS) * 4
            r1 = V_BUF + ((n0 + 1) % RS) * 4
            for jj in range(8):
                tt, h = jj // 2, jj % 2
                sel = S_SELHI if h else S_SELLO
                e(f"v_perm_b32 v{V_T + (t%2)*32 + jj*4 + u}, v{r1 + tt}, v{r0 + tt}, s{sel}")
                if jj in (3, 7):
                    mfma(t - 1, 2 * u + (1 if jj == 7 else 0))
            pos = (t % 4) * 4 + u
            if pos == a.rdpos:
                e(f"ds_read_b32 v{V_F}, v{V_CA} offset:4")
            if pos == a.rdpos + 1:
                e("s_waitcnt lgkmcnt(0)")
                e(f"v_cmp_ne_u32 vcc, 0, v{V_F}")
            if peeled and u >= 1:
                for jj in (2 * u - 2, 2 * u - 1):
                    e(f"ds_write_b128 v{V_L}, {ar(A_K+jj*4,4)} offset:{L_KP + jj*1024}")
        if peeled:
            e(f"v_lshlrev_b32 v9, 8, v{V_ONE}")
            e("s_nop 5")
            for jj in (6, 7):
                e(f"ds_write_b128 v{V_L}, {ar(A_K+jj*4,4)} offset:{L_KP + jj*1024}")
            e(f"ds_add_u32 v{V_CW}, v9")

    def body(t0, midlabel=None):
        for t in range(t0, t0 + 4):
            if midlabel and t == t0 + 1:
                g.lab(midlabel)
            step(t)
        e(f"ds_add_u32 v{V_CW}, v{V_ONE}")
        if a.stamps == 1:
            stamp()

    def loop(label, t0, m, last, midlabel=None):
        mode["m"] = m
        g.lab(label)
        start = len(L)
        body(t0, midlabel)
        txt0 = L[start:]
        del L[start:]
        body(t0 + 4, midlabel)
        assert txt0 == L[start:], "loop body not uniform"
        e(f"s_add_u32 s{S_CNT}, s{S_CNT}, 1")
        e(f"s_cmp_lt_u32 s{S_CNT}, {last}")
        e(f"s_cbranch_scc1 {label}")

    def shift(d):
        g.q = [(("r", x[1] + d * 8) if x[0] == "r" else ("e", x[1] + d)) if isinstance(x, tuple) else x for x in g.q]
        made["t"] += d

    assert a.rdpos >= 4
    loop("L_k", 0, "K", 16)
    L.append("; HOPV")
    shift(64 - 8)
    qsave, msave = list(g.q), made["t"]
    mode["m"] = "Vf"
    step(64, peeled=True)
    e("s_branch L_v1")
    g.q, made["t"] = qsave, msave
    shift(4)
    loop("L_v", 68, "V", 31 if a.plast else 32, midlabel="L_v1")
    if a.plast:
        shift(124 - 76)
        mode["m"] = "Vl"
        for t in range(124, 128):
            g.c(f"--- last body step {t % 4}")
            for u in range(4):
                n0 = t * 8 + 2 * u
                g.wait_tag(("r", n0 + 1))
                for k in range(2):
                    if n0 + W + k < 1024:
                        issue_row(n0 + W + k)
                if u == a.eu and t + 2 < 128:
                    assert ("e", t + 2) not in g.q
                    s_ = (t + 2) % 4
                    for i in range(4):
                        e(f"v_accvgpr_write_b32 a{A_E + s_*4 + i}, v{V_ES + s_*4 + i}")
                if t == 126 and u == 0:
                    e("s_barrier")
                    e(f"ds_read_b64 {vr(V_P,2)}, v{V_L8} offset:{L_P}")
                r0 = V_BUF + (n0 % RS) * 4
                r1 = V_BUF + ((n0 + 1) % RS) * 4
                fin = (t == 127 and u == 3)
                pend = []
                if t == 127:
                    pend = {0: [0, 1, 2], 1: [3, 4, 5], 2: [6, 7], 3: []}[u]
                for jj in range(8):
                    tt, h = jj // 2, jj % 2
                    sel = S_SELHI if h else S_SELLO
                    e(f"v_perm_b32 v{V_T + (t%2)*32 + jj*4 + u}, v{r1 + tt}, v{r0 + tt}, s{sel}")
                    if t < 127 and jj in (3, 7):
                        mfma(t - 1, 2 * u + (1 if jj == 7 else 0))
                    if t == 127 and jj in (2, 5, 7) and pend:
                        mfma(126, pend.pop(0))
                    if fin and jj >= 2:
                        mfma(127, jj - 2)
        if a.stamps == 1:
            stamp()
        e("s_waitcnt lgkmcnt(0)")
        mfma(127, 6)
        mfma(127, 7)
    else:
        e("s_barrier")
        e(f"ds_read_b64 {vr(V_P,2)}, v{V_L8} offset:{L_P}")
        for jj in range(8):
            mfma(127, jj)
        e("s_waitcnt lgkmcnt(0)")
    KP = V_T
    for jj in range(8):
        e(f"v_cvt_pk_bf16_f32 v{KP + jj*2}, v{V_AV + jj*4}, v{V_AV + jj*4 + 1}")
        e(f"v_cvt_pk_bf16_f32 v{KP + jj*2 + 1}, v{V_AV + jj*4 + 2}, v{V_AV + jj*4 + 3}")
        if jj >= 1:
            e(f"v_mfma_f32_16x16x16_bf16 {vr(V_AV + (jj-1)*4, 4)}, {vr(V_P,2)}, {vr(KP + (jj-1)*2, 2)}, 0")
    e("s_nop 1")
    e(f"v_mfma_f32_16x16x16_bf16 {vr(V_AV + 7*4, 4)}, {vr(V_P,2)}, {vr(KP + 7*2, 2)}, 0")
    X = V_T + 16
    for k in range(2):
        e(f"v_cvt_pk_bf16_f32 v{X + k}, v{V_AV + 2*k*4}, v{V_AV + (2*k+1)*4}")
    e("s_nop 0")
    e(f"v_cvt_pk_bf16_f32 v{X + 2}, v{V_AV + 4*4}, v{V_AV + 5*4}")
    e("s_nop 3")
    e(f"v_cvt_pk_bf16_f32 v{X + 3}, v{V_AV + 6*4}, v{V_AV + 7*4}")
    e(f"buffer_store_dwordx4 {vr(X,4)}, v{V_L}, s[{S_O}:{S_O+3}], 0 offen")
    L.append("; HOPEND")
    if a.stamps:
        e("s_waitcnt vmcnt(0)")
        stamp()
        stamp()
        e("s_getreg_b32 s64, hwreg(HW_REG_XCC_ID)")
        e("s_getreg_b32 s65, hwreg(HW_REG_HW_ID)")
        e(f"v_writelane_b32 v{V_ST}, s64, 62")
        e(f"v_writelane_b32 v{V_ST}, s65, 63")
        e("s_lshl_b32 s62, s2, 8")
        e("s_add_u32 s68, s18, s62")
        e("s_addc_u32 s69, s19, 0")
        e("s_mov_b32 s70, 256")
        e("s_mov_b32 s71, 0x20000")
        e("v_lshlrev_b32 v20, 2, v0")
        e(f"buffer_store_dword v{V_ST}, v20, s[68:71], 0 offen")
    e("s_endpgm")

    g.lab("L_helper")
    H_Q, H_KP, H_T, H_S = 16, 32, 48, 80
    H_RD, H_WR, H_PV, H_D = 96, 97, 98, 99
    e(f"s_add_u32 s{S_D}, s6, s{S_HO}")
    e(f"s_addc_u32 s{S_D+1}, s7, 0")
    e(f"s_mov_b32 s{S_E}, s10")
    e(f"s_mov_b32 s{S_E+1}, s11")
    e(f"s_add_u32 s{S_O}, s14, s{S_QO}")
    e(f"s_addc_u32 s{S_O+1}, s15, 0")
    e(f"s_mov_b32 s{S_B}, s16")
    e(f"s_mov_b32 s{S_B+1}, s17")
    e(f"s_mov_b32 s{S_B+2}, 256")
    e(f"s_mov_b32 s{S_B+3}, 0x20000")
    if a.gain:
        e("s_cmp_lg_u32 s2, 0")
        e("s_cbranch_scc1 L_noclr")
        e("v_mov_b32 v12, 0x80000")
        e("v_mov_b32 v13, 0")
        e("s_mov_b64 exec, 1")
        e("global_store_dword v12, v13, s[18:19] sc0 sc1")
        e("s_mov_b64 exec, -1")
        g.lab("L_noclr")
    e("s_and_b32 s56, s2, 7")
    e("s_lshl_b32 s56, s56, 5")
    e("s_lshr_b32 s57, s2, 3")
    e("s_add_u32 s58, s56, s57")
    e(f"v_mov_b32 v{H_WR}, 0x1000")
    e(f"v_add_u32 v{H_RD}, s56, v0")
    e(f"v_cmp_gt_u32 vcc, 32, v0")
    e(f"s_add_u32 s{S_Q}, s4, s{S_QO}")
    e(f"s_addc_u32 s{S_Q+1}, s5, 0")
    e(f"v_cndmask_b32 v{H_RD}, v{H_WR}, v{H_RD}, vcc")
    e(f"v_writelane_b32 v{H_WR}, s58, 0")
    e(f"s_mov_b32 s{S_Q+2}, 0x400")
    e(f"s_mov_b32 s{S_Q+3}, 0x20000")
    e(f"v_lshrrev_b32 v14, 2, v10")
    e(f"v_lshlrev_b32 v14, 8, v14")
    e(f"v_lshl_add_u32 v14, v11, 6, v14")
    e(f"buffer_load_ubyte v{H_PV}, v{H_RD}, s[{S_B}:{S_B+3}], 0 offen nt")
    for m in range(4):
        off = f" offset:{m*16}" if m else ""
        e(f"buffer_load_dwordx4 {vr(H_Q+m*4,4)}, v14, s[{S_Q}:{S_Q+3}], 0 offen{off}")
    if a.pf:
        e("s_and_b32 s59, s57, 15")
        e("s_lshl_b32 s59, s59, 12")
        e("s_cmp_lt_u32 s57, 16")
        e("s_cselect_b64 s[64:65], s[10:11], s[12:13]")
        e("s_mov_b32 s66, 0x10000")
        e("s_mov_b32 s67, 0x20000")
        e("v_lshlrev_b32 v15, 6, v0")
        e(f"buffer_load_dword v13, v15, s[64:67], s59 offen")
    e("s_mov_b32 s62, 0x3db504f3")
    e("s_mov_b32 s63, 0x3fb8aa3b")
    e("s_mov_b32 s70, 0")
    e("s_mov_b32 s71, 0")
    e("s_mov_b32 s72, 4")
    e("s_mov_b32 s73, 0")
    if a.par:
        e("s_bitcmp1_b32 s2, 0")
        e(f"s_cselect_b32 s79, {a.thr + a.par - a.gain // 2}, {a.thr - a.par - a.gain // 2}")
    if a.hopv:
        e("s_mov_b64 exec, 0")
        e("s_branch L_hv0")
        g.lab("L_hvdone")
        e("s_mov_b64 exec, -1")
    g.lab("L_hpoll")
    e(f"ds_read_b32 v12, v{V_CA}")
    e("s_waitcnt lgkmcnt(0)")
    e("v_readfirstlane_b32 s74, v12")
    e("s_xor_b32 s75, s74, s70")
    e("s_cbranch_scc1 L_hchg")
    e(f"s_sleep {a.sleep}")
    e("s_branch L_hpoll")
    g.lab("L_hchg")
    e("s_mov_b32 s70, s74")
    e("s_and_b32 s74, s74, 0xff")
    e("s_and_b32 s76, s75, 0xff")
    e("s_cbranch_scc0 L_hsm")
    e(f"s_cmp_ge_u32 s74, {a.xend}")
    e("s_cbranch_scc1 L_hfin")
    e(f"v_mov_b32 v{H_D}, s74")
    e(f"buffer_load_ubyte v{H_PV}, v{H_RD}, s[{S_B}:{S_B+3}], 0 offen nt")
    if a.gain:
        e(f"v_or_b32 v{H_D}, s71, v{H_D}")
    e(f"buffer_store_byte v{H_D}, v{H_WR}, s[{S_B}:{S_B+3}], 0 offen")
    e("s_waitcnt vmcnt(1)")
    if a.gain:
        e(f"v_readlane_b32 s77, v{H_PV}, 0")
        e(f"v_and_b32 v{H_PV}, 31, v{H_PV}")
    e(f"v_cmp_le_u32 vcc, s74, v{H_PV}")
    e("s_nop 0")
    e("s_bcnt1_i32_b64 s78, vcc")
    if a.gain:
        e("s_bfe_i32 s77, s77, 0x30005")
        if a.emax < 3:
            e(f"s_min_i32 s77, s77, {a.emax}")
        e(f"s_mul_i32 s77, s77, {a.gain}")
        e("s_add_i32 s78, s78, s77")
    e(f"s_cmp_lt_i32 s78, {'s79' if a.par else a.thr - a.gain // 2}")
    e("s_cselect_b32 s78, 1, 0")
    e("v_mov_b32 v13, s78")
    e(f"ds_write_b32 v{V_CA}, v13 offset:4")
    if a.gain:
        e("s_and_b32 s76, s74, 1")
        e("s_or_b32 s76, s76, s57")
        e("s_cbranch_scc1 L_hrep")
        e("s_waitcnt lgkmcnt(0)")
        e("s_sub_i32 s71, s72, s73")
        e("s_max_i32 s71, s71, 0")
        e("s_min_i32 s71, s71, 7")
        e("s_add_i32 s71, s71, 4")
        e("s_and_b32 s71, s71, 7")
        e("s_lshl_b32 s71, s71, 5")
        e("s_lshl_b32 s73, s74, 2")
        e("s_sub_u32 s73, s73, 8")
        e("s_mov_b32 s72, 1")
        e("s_atomic_add s72, s[18:19], 0x80000 glc")
        g.lab("L_hrep")
    e("s_bitcmp1_b32 s75, 8")
    e("s_cbranch_scc0 L_hpoll")
    g.lab("L_hsm")
    for jj in range(8):
        e(f"ds_read_b128 {vr(H_T + jj*4, 4)}, v{V_L} offset:{L_KP + jj*1024}")
    e("s_waitcnt lgkmcnt(0)")
    for u in range(4):
        for m in range(4):
            e(f"v_cvt_pk_bf16_f32 v{H_KP + m*4 + u}, v{H_T + 2*u*4 + m}, v{H_T + (2*u+1)*4 + m}")
    e("s_waitcnt vmcnt(0)")
    S = H_S; X = H_S + 4; M = H_S + 8
    e("s_nop 0")
    for m in range(4):
        C = "0" if m == 0 else vr(S, 4)
        e(f"v_mfma_f32_16x16x32_bf16 {vr(S,4)}, {vr(H_KP+m*4,4)}, {vr(H_Q+m*4,4)}, {C}")
    e("s_nop 7")
    def rb(src):
        e(f"v_cvt_pk_bf16_f32 v{X}, v{src}, v{src+1}")
        e(f"v_cvt_pk_bf16_f32 v{X+1}, v{src+2}, v{src+3}")
        e(f"v_lshlrev_b32 v{src}, 16, v{X}")
        e(f"v_and_b32 v{src+1}, 0xffff0000, v{X}")
        e(f"v_lshlrev_b32 v{src+2}, 16, v{X+1}")
        e(f"v_and_b32 v{src+3}, 0xffff0000, v{X+1}")
    rb(S)
    for i in range(4):
        e(f"v_mul_f32 v{S+i}, s62, v{S+i}")
    rb(S)
    e(f"v_max_f32 v{M}, v{S}, v{S+1}")
    e(f"v_max3_f32 v{M}, v{S+2}, v{S+3}, v{M}")
    def xlane(op):
        e(f"v_mov_b32 v{M+1}, v{M}")
        e("s_nop 1")
        e(f"v_permlane32_swap_b32 v{M}, v{M+1}")
        e("s_nop 1")
        e(f"{op} v{M}, v{M}, v{M+1}")
        e(f"v_mov_b32 v{M+1}, v{M}")
        e("s_nop 1")
        e(f"v_permlane16_swap_b32 v{M}, v{M+1}")
        e("s_nop 1")
        e(f"{op} v{M}, v{M}, v{M+1}")
    xlane("v_max_f32")
    for i in range(4):
        e(f"v_sub_f32 v{S+i}, v{S+i}, v{M}")
    for i in range(4):
        e(f"v_mul_f32 v{S+i}, s63, v{S+i}")
    for i in range(4):
        e(f"v_exp_f32 v{S+i}, v{S+i}")
    e("s_nop 0")
    e(f"v_add_f32 v{M}, v{S}, v{S+1}")
    e(f"v_add_f32 v{M+2}, v{S+2}, v{S+3}")
    e(f"v_add_f32 v{M}, v{M}, v{M+2}")
    xlane("v_add_f32")
    e(f"v_rcp_f32 v{M}, v{M}")
    e("s_nop 0")
    for i in range(4):
        e(f"v_mul_f32 v{S+i}, v{S+i}, v{M}")
    e(f"v_cvt_pk_bf16_f32 v{H_S+12}, v{S}, v{S+1}")
    e(f"v_cvt_pk_bf16_f32 v{H_S+13}, v{S+2}, v{S+3}")
    e(f"v_lshlrev_b32 v12, 3, v0")
    e(f"ds_write_b64 v12, {vr(H_S+12,2)} offset:{L_P}")
    e(f"s_cmp_lt_u32 s74, {a.xend}")
    e("s_cbranch_scc1 L_hpoll")
    g.lab("L_hfin")
    e("s_bitcmp1_b32 s75, 8")
    e("s_mov_b32 s75, 0")
    e("s_cbranch_scc1 L_hsm")
    e("v_mov_b32 v13, 0")
    e(f"ds_write_b32 v{V_CA}, v13 offset:4")
    e("s_waitcnt lgkmcnt(0)")
    g.lab("L_end")
    e("s_endpgm")

    if a.hopv:
        i0 = L.index("; HOPV"); i1 = L.index("; HOPEND")
        out = []; cnt = a.hopv; n = 0
        for ln in L[i0+1:i1]:
            isinst = ln.startswith("    ") and not ln.strip().startswith((";", "."))
            if isinst:
                if cnt >= a.hopv:
                    out.append(f"L_hv{n}:")
                    out.append(f"    s_cbranch_execz L_hv{n+1}")
                    n += 1; cnt = 4
                cnt += isz(ln)
            out.append(ln)
        out = [x.replace(f"L_hv{n}", "L_hvdone") if x.endswith(f" L_hv{n}") else x for x in out]
        L[i0+1:i1] = out

    L.append('.section .rodata,"a"')
    L.append(".p2align 6")
    L.append(f".amdhsa_kernel {NAME}_kernel")
    L.append(f"  .amdhsa_next_free_vgpr {total}")
    L.append("  .amdhsa_next_free_sgpr 88")
    L.append(f"  .amdhsa_accum_offset {accum}")
    L.append("  .amdhsa_group_segment_fixed_size 0")
    L.append("  .amdhsa_kernarg_size 64")
    L.append("  .amdhsa_user_sgpr_count 2")
    L.append("  .amdhsa_user_sgpr_kernarg_segment_ptr 1")
    L.append("  .amdhsa_system_sgpr_workgroup_id_x 1")
    L.append(".end_amdhsa_kernel")
    return "\n".join(L) + "\n"

if __name__ == "__main__":
    p = argparse.ArgumentParser()
    p.add_argument("--w", type=int, default=22)
    p.add_argument("--wt", type=int, default=19)
    p.add_argument("--tev", type=int, default=1)
    p.add_argument("--eu", type=int, default=0)
    p.add_argument("--rx0", type=int, default=0)
    p.add_argument("--m", type=int, default=2)
    p.add_argument("--ls", type=int, default=16)
    p.add_argument("--f1", type=int, default=1)
    p.add_argument("--f2", type=int, default=0)
    p.add_argument("--thr", type=int, default=18)
    p.add_argument("--par", type=int, default=0)
    p.add_argument("--gain", type=int, default=0)
    p.add_argument("--emax", type=int, default=3)
    p.add_argument("--swarm", type=int, default=0)
    p.add_argument("--kfirst", type=int, default=0)
    p.add_argument("--plast", type=int, default=0)
    p.add_argument("--xend", type=int, default=29)
    p.add_argument("--rdpos", type=int, default=6)
    p.add_argument("--sleep", type=int, default=1)
    p.add_argument("--hopv", type=int, default=256)
    p.add_argument("--pf", type=int, default=1)
    p.add_argument("--minlds", type=int, default=90000)
    p.add_argument("--stamps", type=int, default=0)
    p.add_argument("-o", default="/dev/stdout")
    a = p.parse_args()
    open(a.o, "w").write(gen(a))
```

```python
import sys, argparse, math
from gen import Gen, vr, ar, NAME, HEADER

def isz(ln):
    op = ln.strip().split()[0]
    if op.startswith(("s_nop", "s_waitcnt", "s_cbranch", "s_branch", "s_barrier", "s_cmp", "s_cselect", "s_addc", "s_bcnt", "s_lshr", "s_lshl", "v_add_u32", "v_mov_b32", "v_cmp")):
        return 4
    return 8

def gen(a):
    g = Gen(a)
    W, RS, G = a.w, 32, 64
    assert W % 2 == 0 and W <= RS - 2
    V_KV, V_E, V_L, V_L8 = 1, 2, 3, 4
    V_CA, V_ONE, V_ST, V_P, V_F, V_CW = 5, 6, 7, 8, 10, 11
    V_ES, V_T = 12, 28
    V_BUF = V_T + 64
    V_AV = V_BUF + RS * 4
    vend = V_AV + 32
    A_K, A_E = 0, 32
    aend = 48
    accum = (vend + 3) // 4 * 4
    total = accum + aend
    S_D, S_E, S_B, S_Q, S_O = 20, 24, 28, 32, 36
    S_EO, S_EO7 = 42, 43
    S_R = 52
    S_SELLO, S_SELHI, S_CNT, S_HO, S_QO, S_VB = 44, 45, 46, 47, 48, 50
    L_KP, L_P, L_C = 0, 8192, 8704
    M_, LS = a.m, a.ls
    S_ = 1 << LS
    U_ = 8192 // M_
    LU = int(math.log2(U_))
    skip = (M_ * S_ - S_) if M_ > 1 else 0
    omask = 0x7ffff & ~skip & ~(U_ - 1)
    gps = S_ // U_ if M_ > 1 else 64

    L = g.L
    L.append(HEADER.rstrip("\n"))
    L.append(f"; @launch grid=(256,1,1) block=(128,1,1) lds={max(a.minlds, 9024)}")
    L.append('.amdgcn_target "amdgcn-amd-amdhsa--gfx950"')
    L.append(".text")
    L.append(f".globl {NAME}_kernel")
    L.append(".p2align 12")
    L.append(".p2align 8")
    L.append(f".type {NAME}_kernel,@function")
    L.append(f"{NAME}_kernel:")
    e = g.e
    e("s_cmp_ge_u32 s2, 256")
    e("s_cbranch_scc1 L_end")
    if a.stamps:
        e("s_memrealtime s[60:61]")
    e("s_load_dwordx16 s[4:19], s[0:1], 0")
    e("v_readfirstlane_b32 s3, v0")
    e("v_and_b32 v0, 63, v0")
    e(f"v_mov_b32 v{V_CA}, {L_C}")
    e(f"v_mov_b32 v8, 0")
    e(f"v_mov_b32 v9, {0 if a.rx0 else 1}")
    e(f"ds_write_b64 v{V_CA}, v[8:9]")
    e("v_and_b32 v10, 15, v0")
    e("v_lshrrev_b32 v11, 4, v0")
    if M_ == 1:
        e(f"v_lshlrev_b32 v13, 11, v11")
    elif M_ == 4:
        e(f"v_lshlrev_b32 v13, {LS}, v11")
    else:
        e(f"v_lshrrev_b32 v13, 1, v11")
        e(f"v_lshlrev_b32 v13, {LS}, v13")
        e(f"v_and_b32 v12, 1, v11")
        e(f"v_lshl_add_u32 v13, v12, 11, v13")
    e(f"v_lshl_add_u32 v{V_KV}, v10, 4, v13")
    e(f"v_lshrrev_b32 v13, 7, v13")
    e(f"v_lshl_add_u32 v{V_E}, v10, 12, v13")
    e(f"v_lshlrev_b32 v{V_L}, 4, v0")
    e(f"s_lshr_b32 s{S_EO}, s2, 3")
    if a.f1 != 1:
        e(f"s_mul_i32 s{S_EO}, s{S_EO}, {a.f1}")
    if a.f2:
        e("s_and_b32 s41, s2, 7")
        e(f"s_mul_i32 s41, s41, {a.f2}")
        e(f"s_add_u32 s{S_EO}, s{S_EO}, s41")
    if M_ > 1:
        e(f"s_lshr_b32 s41, s{S_EO}, {int(math.log2(gps))}")
        e(f"s_lshl_b32 s41, s41, {LS + int(math.log2(M_))}")
        e(f"s_and_b32 s{S_EO}, s{S_EO}, {gps - 1}")
        e(f"s_lshl_b32 s{S_EO}, s{S_EO}, {LU}")
        e(f"s_or_b32 s{S_EO}, s{S_EO}, s41")
    else:
        e(f"s_lshl_b32 s{S_EO}, s{S_EO}, {LU}")
    e(f"s_and_b32 s{S_R}, s{S_EO}, {omask}")
    if a.dirbit >= 0:
        e(f"s_bitcmp1_b32 s2, {a.dirbit}")
        e(f"s_cselect_b32 s56, 0, {skip}")
        e(f"s_movk_i32 s57, {U_}")
        e(f"s_cselect_b32 s57, {-U_}, s57")
    e(f"s_lshl_b32 s{S_HO}, s2, 19")
    e(f"s_mov_b32 s{S_D+2}, 0x80000")
    e(f"s_mov_b32 s{S_D+3}, 0x20000")
    e(f"s_lshr_b32 s{S_EO7}, s{S_R}, 7")
    e(f"s_mov_b32 s{S_E+2}, 0x10000")
    e(f"s_mov_b32 s{S_E+3}, 0x20000")
    e(f"s_lshl_b32 s{S_QO}, s2, 10")
    e(f"s_mov_b32 s{S_O+2}, 0x400")
    e(f"s_mov_b32 s{S_O+3}, 0x20000")
    e("s_cmp_ge_u32 s3, 64")
    e("s_waitcnt lgkmcnt(0)")
    if not a.late:
        e("s_barrier")
    e("s_cbranch_scc1 L_helper")
    def stamp():
        e("s_waitcnt lgkmcnt(0)")
        e(f"v_writelane_b32 v{V_ST}, s60, m0")
        e("s_memrealtime s[60:61]")
        e("s_add_u32 m0, m0, 1")
    if a.stamps:
        e(f"v_mov_b32 v{V_ST}, 0")
        e("s_mov_b32 m0, 0")
        e("s_nop 3")
        stamp()
    e(f"s_add_u32 s{S_D}, s6, s{S_HO}")
    e(f"s_addc_u32 s{S_D+1}, s7, 0")
    e(f"s_mov_b32 s{S_E}, s10")
    e(f"s_mov_b32 s{S_E+1}, s11")

    mode = {"m": "pro"}
    NR = 4
    def ring(t):
        return S_R + t % NR
    def mkoff(t):
        src, dst = ring(t - 1), ring(t)
        if a.dirbit >= 0:
            e(f"s_or_b32 s{dst}, s{src}, s56")
            e(f"s_add_u32 s{dst}, s{dst}, s57")
        elif skip:
            e(f"s_or_b32 s{dst}, s{src}, {skip}")
            e(f"s_add_u32 s{dst}, s{dst}, {U_}")
        else:
            e(f"s_add_u32 s{dst}, s{src}, {U_}")
        e(f"s_and_b32 s{dst}, s{dst}, {omask}")
        made["t"] = t
    made = {"t": 0}
    def issue_row(n):
        if n % 32 == 0 and n > 0:
            if mode["m"] == "K":
                e(f"s_cmp_eq_u32 s{S_CNT}, 15")
                e(f"s_cselect_b64 s[{S_D}:{S_D+1}], s[{S_VB}:{S_VB+1}], s[{S_D}:{S_D+1}]")
            elif mode["m"] == "V" and not a.plast:
                e(f"s_cmp_eq_u32 s{S_CNT}, 31")
                e(f"s_cselect_b32 s{S_D+2}, 0, s{S_D+2}")
        t, i = n // 8, n % 8
        assert made["t"] - NR < t <= made["t"], (t, made["t"])
        off = f" offset:{i*256}" if i else ""
        g.vm(f"buffer_load_dwordx4 {vr(V_BUF+(n%RS)*4,4)}, v{V_KV}, s[{S_D}:{S_D+3}], s{ring(t)} offen{off} nt", ("r", n))
    def issue_e(t, dst):
        if t % 4 == 0 and t > 0:
            if mode["m"] == "K":
                e(f"s_cmp_eq_u32 s{S_CNT}, 14")
                e(f"s_cselect_b64 s[{S_E}:{S_E+1}], s[12:13], s[{S_E}:{S_E+1}]")
            elif mode["m"] == "V" and not a.plast:
                e(f"s_cmp_eq_u32 s{S_CNT}, 30")
                e(f"s_cselect_b32 s{S_E+2}, 0, s{S_E+2}")
        if t > 0:
            mkoff(t)
            e(f"s_lshr_b32 s{S_EO7}, s{ring(t)}, 7")
        g.vm(f"buffer_load_dwordx4 {dst}, v{V_E}, s[{S_E}:{S_E+3}], s{S_EO7} offen", ("e", t))

    if a.swarm:
        e(f"s_load_dword s80, s[{S_E}:{S_E+1}], 0")
        e(f"s_load_dword s81, s[{S_D}:{S_D+1}], 0")
    front = [(0, ar(A_E, 4)), (1, ar(A_E + 4, 4))]
    seq = []
    for t in range(-4, 0):
        for u in range(4):
            for k in range(2):
                n = t * 8 + 2 * u + W + k
                if n >= 0:
                    seq.append(("r", n))
            if u == a.eu:
                x = (t + 6, vr(V_ES + ((t + 6) % 4) * 4, 4))
                if seq:
                    seq.append(("e", x))
                else:
                    front.append(x)
    if a.kfirst:
        assert a.kfirst <= 2 * a.eu + 1 or len(front) == 2
        assert all(x[0] == "r" for x in seq[:a.kfirst])
    def emit_front():
        for x in front:
            issue_e(*x)
            if a.kfirst:
                g.q.pop()
    if not a.kfirst:
        emit_front()
    for x in seq:
        if x[0] == "r":
            issue_row(x[1])
            if a.kfirst and x[1] == a.kfirst - 1:
                emit_front()
        else:
            issue_e(*x[1])
    e(f"s_add_u32 s{S_VB}, s8, s{S_HO}")
    e(f"s_addc_u32 s{S_VB+1}, s9, 0")
    e(f"s_add_u32 s{S_O}, s14, s{S_QO}")
    e(f"s_addc_u32 s{S_O+1}, s15, 0")
    e(f"s_mov_b32 s{S_SELLO}, 0x05040100")
    e(f"s_mov_b32 s{S_SELHI}, 0x07060302")
    e(f"s_mov_b32 s{S_CNT}, 0")
    e(f"s_movk_i32 s41, {L_C}")
    e(f"v_lshlrev_b32 v{V_L8}, 3, v0")
    e(f"v_mov_b32 v{V_ONE}, 1")
    e(f"v_lshl_add_u32 v{V_CW}, v0, 2, v{V_CA}")
    e(f"v_add_u32 v{V_CW}, 4, v{V_CW}")
    e(f"v_writelane_b32 v{V_CW}, s41, 0")
    e(f"s_mov_b64 vcc, {0 if a.rx0 else -1}")
    Z = V_T
    for i in range(4):
        e(f"v_mov_b32 v{Z + i}, 0")
    e("s_nop 1")
    e(f"v_mfma_f32_16x16x32_bf16 {ar(A_E + 12, 4)}, {vr(Z,4)}, {vr(Z,4)}, 0")
    for d in (vr(V_T + 32, 16), vr(V_T + 48, 16), ar(A_K, 16), ar(A_K + 16, 16), vr(V_AV, 16), vr(V_AV + 16, 16)):
        e(f"v_mfma_f32_32x32x16_bf16 {d}, {vr(Z,4)}, {vr(Z,4)}, 0")
    e("s_nop 7")
    e("s_nop 4")
    if a.late:
        e("s_barrier")

    def mfma(t, jj):
        T = vr(V_T + (t % 2) * 32 + jj * 4, 4)
        E = ar(A_E + (t % 4) * 4, 4)
        if t < G:
            e(f"v_mfma_f32_16x16x32_bf16 {ar(A_K+jj*4,4)}, {T}, {E}, {ar(A_K+jj*4,4)}")
        else:
            e(f"v_mfma_f32_16x16x32_bf16 {vr(V_AV+jj*4,4)}, {E}, {T}, {vr(V_AV+jj*4,4)}")

    def step(t, peeled=False):
        g.c(f"--- step {t % 4}")
        for u in range(4):
            n0 = t * 8 + 2 * u
            if u % a.tev == 0:
                idx = g.q.index(("r", n0 + W - a.wt + 1))
                nt = len(g.q) - 1 - idx
                lb = f"L_rx{mode['m']}_{t%4}_{u}"
                e(f"s_cbranch_vccz {lb}")
                e(f"s_waitcnt vmcnt({nt})")
                g.lab(lb)
            g.wait_tag(("r", n0 + 1))
            issue_row(n0 + W)
            issue_row(n0 + W + 1)
            if u == a.eu:
                assert ("e", t + 2) not in g.q
                s = (t + 2) % 4
                for i in range(4):
                    e(f"v_accvgpr_write_b32 a{A_E + s*4 + i}, v{V_ES + s*4 + i}")
                issue_e(t + 6, vr(V_ES + s * 4, 4))
            r0 = V_BUF + (n0 % RS) * 4
            r1 = V_BUF + ((n0 + 1) % RS) * 4
            for jj in range(8):
                tt, h = jj // 2, jj % 2
                sel = S_SELHI if h else S_SELLO
                e(f"v_perm_b32 v{V_T + (t%2)*32 + jj*4 + u}, v{r1 + tt}, v{r0 + tt}, s{sel}")
                if jj in (3, 7):
                    mfma(t - 1, 2 * u + (1 if jj == 7 else 0))
            pos = (t % 4) * 4 + u
            if pos == a.rdpos:
                e(f"ds_read_b32 v{V_F}, v{V_CA} offset:4")
            if pos == a.rdpos + 1:
                e("s_waitcnt lgkmcnt(0)")
                e(f"v_cmp_ne_u32 vcc, 0, v{V_F}")
            if peeled and u >= 1:
                for jj in (2 * u - 2, 2 * u - 1):
                    e(f"ds_write_b128 v{V_L}, {ar(A_K+jj*4,4)} offset:{L_KP + jj*1024}")
        if peeled:
            e(f"v_lshlrev_b32 v9, 8, v{V_ONE}")
            e("s_nop 5")
            for jj in (6, 7):
                e(f"ds_write_b128 v{V_L}, {ar(A_K+jj*4,4)} offset:{L_KP + jj*1024}")
            e(f"ds_add_u32 v{V_CW}, v9")

    def body(t0, midlabel=None):
        for t in range(t0, t0 + 4):
            if midlabel and t == t0 + 1:
                g.lab(midlabel)
            step(t)
        e(f"ds_add_u32 v{V_CW}, v{V_ONE}")
        if a.stamps == 1:
            stamp()

    def loop(label, t0, m, last, midlabel=None):
        mode["m"] = m
        g.lab(label)
        start = len(L)
        body(t0, midlabel)
        txt0 = L[start:]
        del L[start:]
        body(t0 + 4, midlabel)
        assert txt0 == L[start:], "loop body not uniform"
        e(f"s_add_u32 s{S_CNT}, s{S_CNT}, 1")
        e(f"s_cmp_lt_u32 s{S_CNT}, {last}")
        e(f"s_cbranch_scc1 {label}")

    def shift(d):
        g.q = [(("r", x[1] + d * 8) if x[0] == "r" else ("e", x[1] + d)) if isinstance(x, tuple) else x for x in g.q]
        made["t"] += d

    assert a.rdpos >= 4
    loop("L_k", 0, "K", 16)
    L.append("; HOPV")
    shift(64 - 8)
    qsave, msave = list(g.q), made["t"]
    mode["m"] = "Vf"
    step(64, peeled=True)
    e("s_branch L_v1")
    g.q, made["t"] = qsave, msave
    shift(4)
    loop("L_v", 68, "V", 31 if a.plast else 32, midlabel="L_v1")
    if a.plast:
        shift(124 - 76)
        mode["m"] = "Vl"
        for t in range(124, 128):
            g.c(f"--- last body step {t % 4}")
            for u in range(4):
                n0 = t * 8 + 2 * u
                g.wait_tag(("r", n0 + 1))
                for k in range(2):
                    if n0 + W + k < 1024:
                        issue_row(n0 + W + k)
                if u == a.eu and t + 2 < 128:
                    assert ("e", t + 2) not in g.q
                    s_ = (t + 2) % 4
                    for i in range(4):
                        e(f"v_accvgpr_write_b32 a{A_E + s_*4 + i}, v{V_ES + s_*4 + i}")
                if t == 126 and u == 0:
                    e("s_barrier")
                    e(f"ds_read_b64 {vr(V_P,2)}, v{V_L8} offset:{L_P}")
                r0 = V_BUF + (n0 % RS) * 4
                r1 = V_BUF + ((n0 + 1) % RS) * 4
                fin = (t == 127 and u == 3)
                pend = []
                if t == 127:
                    pend = {0: [0, 1, 2], 1: [3, 4, 5], 2: [6, 7], 3: []}[u]
                for jj in range(8):
                    tt, h = jj // 2, jj % 2
                    sel = S_SELHI if h else S_SELLO
                    e(f"v_perm_b32 v{V_T + (t%2)*32 + jj*4 + u}, v{r1 + tt}, v{r0 + tt}, s{sel}")
                    if t < 127 and jj in (3, 7):
                        mfma(t - 1, 2 * u + (1 if jj == 7 else 0))
                    if t == 127 and jj in (2, 5, 7) and pend:
                        mfma(126, pend.pop(0))
                    if fin and jj >= 2:
                        mfma(127, jj - 2)
        if a.stamps == 1:
            stamp()
        e("s_waitcnt lgkmcnt(0)")
        mfma(127, 6)
        mfma(127, 7)
    else:
        e("s_barrier")
        e(f"ds_read_b64 {vr(V_P,2)}, v{V_L8} offset:{L_P}")
        for jj in range(8):
            mfma(127, jj)
        e("s_waitcnt lgkmcnt(0)")
    KP = V_T
    for jj in range(8):
        e(f"v_cvt_pk_bf16_f32 v{KP + jj*2}, v{V_AV + jj*4}, v{V_AV + jj*4 + 1}")
        e(f"v_cvt_pk_bf16_f32 v{KP + jj*2 + 1}, v{V_AV + jj*4 + 2}, v{V_AV + jj*4 + 3}")
        if jj >= 1:
            e(f"v_mfma_f32_16x16x16_bf16 {vr(V_AV + (jj-1)*4, 4)}, {vr(V_P,2)}, {vr(KP + (jj-1)*2, 2)}, 0")
    e("s_nop 1")
    e(f"v_mfma_f32_16x16x16_bf16 {vr(V_AV + 7*4, 4)}, {vr(V_P,2)}, {vr(KP + 7*2, 2)}, 0")
    X = V_T + 16
    for k in range(2):
        e(f"v_cvt_pk_bf16_f32 v{X + k}, v{V_AV + 2*k*4}, v{V_AV + (2*k+1)*4}")
    e("s_nop 0")
    e(f"v_cvt_pk_bf16_f32 v{X + 2}, v{V_AV + 4*4}, v{V_AV + 5*4}")
    e("s_nop 3")
    e(f"v_cvt_pk_bf16_f32 v{X + 3}, v{V_AV + 6*4}, v{V_AV + 7*4}")
    e(f"buffer_store_dwordx4 {vr(X,4)}, v{V_L}, s[{S_O}:{S_O+3}], 0 offen")
    L.append("; HOPEND")
    if a.stamps:
        e("s_waitcnt vmcnt(0)")
        stamp()
        stamp()
        e("s_getreg_b32 s64, hwreg(HW_REG_XCC_ID)")
        e("s_getreg_b32 s65, hwreg(HW_REG_HW_ID)")
        e(f"v_writelane_b32 v{V_ST}, s64, 62")
        e(f"v_writelane_b32 v{V_ST}, s65, 63")
        e("s_lshl_b32 s62, s2, 8")
        e("s_add_u32 s68, s18, s62")
        e("s_addc_u32 s69, s19, 0")
        e("s_mov_b32 s70, 256")
        e("s_mov_b32 s71, 0x20000")
        e("v_lshlrev_b32 v20, 2, v0")
        e(f"buffer_store_dword v{V_ST}, v20, s[68:71], 0 offen")
    e("s_endpgm")

    g.lab("L_helper")
    H_Q, H_KP, H_T, H_S = 16, 32, 48, 80
    H_RD, H_WR, H_PV, H_D = 96, 97, 98, 99
    e(f"s_add_u32 s{S_D}, s6, s{S_HO}")
    e(f"s_addc_u32 s{S_D+1}, s7, 0")
    e(f"s_mov_b32 s{S_E}, s10")
    e(f"s_mov_b32 s{S_E+1}, s11")
    e(f"s_add_u32 s{S_O}, s14, s{S_QO}")
    e(f"s_addc_u32 s{S_O+1}, s15, 0")
    e(f"s_mov_b32 s{S_B}, s16")
    e(f"s_mov_b32 s{S_B+1}, s17")
    e(f"s_mov_b32 s{S_B+2}, 256")
    e(f"s_mov_b32 s{S_B+3}, 0x20000")
    if a.gain:
        e("s_cmp_lg_u32 s2, 0")
        e("s_cbranch_scc1 L_noclr")
        e("v_mov_b32 v12, 0x80000")
        e("v_mov_b32 v13, 0")
        e("s_mov_b64 exec, 1")
        e("global_store_dword v12, v13, s[18:19] sc0 sc1")
        e("s_mov_b64 exec, -1")
        g.lab("L_noclr")
    e("s_and_b32 s56, s2, 7")
    e("s_lshl_b32 s56, s56, 5")
    e("s_lshr_b32 s57, s2, 3")
    e("s_add_u32 s58, s56, s57")
    e(f"v_mov_b32 v{H_WR}, 0x1000")
    e(f"v_add_u32 v{H_RD}, s56, v0")
    e(f"v_cmp_gt_u32 vcc, 32, v0")
    e(f"s_add_u32 s{S_Q}, s4, s{S_QO}")
    e(f"s_addc_u32 s{S_Q+1}, s5, 0")
    e(f"v_cndmask_b32 v{H_RD}, v{H_WR}, v{H_RD}, vcc")
    e(f"v_writelane_b32 v{H_WR}, s58, 0")
    e(f"s_mov_b32 s{S_Q+2}, 0x400")
    e(f"s_mov_b32 s{S_Q+3}, 0x20000")
    e(f"v_lshrrev_b32 v14, 2, v10")
    e(f"v_lshlrev_b32 v14, 8, v14")
    e(f"v_lshl_add_u32 v14, v11, 6, v14")
    e(f"buffer_load_ubyte v{H_PV}, v{H_RD}, s[{S_B}:{S_B+3}], 0 offen nt")
    for m in range(4):
        off = f" offset:{m*16}" if m else ""
        e(f"buffer_load_dwordx4 {vr(H_Q+m*4,4)}, v14, s[{S_Q}:{S_Q+3}], 0 offen{off}")
    if a.pf:
        e("s_and_b32 s59, s57, 15")
        e("s_lshl_b32 s59, s59, 12")
        e("s_cmp_lt_u32 s57, 16")
        e("s_cselect_b64 s[64:65], s[10:11], s[12:13]")
        e("s_mov_b32 s66, 0x10000")
        e("s_mov_b32 s67, 0x20000")
        e("v_lshlrev_b32 v15, 6, v0")
        e(f"buffer_load_dword v13, v15, s[64:67], s59 offen")
    e("s_mov_b32 s62, 0x3db504f3")
    e("s_mov_b32 s63, 0x3fb8aa3b")
    e("s_mov_b32 s70, 0")
    e("s_mov_b32 s71, 0")
    e("s_mov_b32 s72, 4")
    e("s_mov_b32 s73, 0")
    if a.par:
        e("s_bitcmp1_b32 s2, 0")
        e(f"s_cselect_b32 s79, {a.thr + a.par - a.gain // 2}, {a.thr - a.par - a.gain // 2}")
    if a.late:
        e("s_barrier")
    if a.hopv:
        e("s_mov_b64 exec, 0")
        e("s_branch L_hv0")
        g.lab("L_hvdone")
        e("s_mov_b64 exec, -1")
    g.lab("L_hpoll")
    e(f"ds_read_b32 v12, v{V_CA}")
    e("s_waitcnt lgkmcnt(0)")
    e("v_readfirstlane_b32 s74, v12")
    e("s_xor_b32 s75, s74, s70")
    e("s_cbranch_scc1 L_hchg")
    e(f"s_sleep {a.sleep}")
    e("s_branch L_hpoll")
    g.lab("L_hchg")
    e("s_mov_b32 s70, s74")
    e("s_and_b32 s74, s74, 0xff")
    e("s_and_b32 s76, s75, 0xff")
    e("s_cbranch_scc0 L_hsm")
    e(f"s_cmp_ge_u32 s74, {a.xend}")
    e("s_cbranch_scc1 L_hfin")
    e(f"v_mov_b32 v{H_D}, s74")
    e(f"buffer_load_ubyte v{H_PV}, v{H_RD}, s[{S_B}:{S_B+3}], 0 offen nt")
    if a.gain:
        e(f"v_or_b32 v{H_D}, s71, v{H_D}")
    e(f"buffer_store_byte v{H_D}, v{H_WR}, s[{S_B}:{S_B+3}], 0 offen")
    e("s_waitcnt vmcnt(1)")
    if a.gain:
        e(f"v_readlane_b32 s77, v{H_PV}, 0")
        e(f"v_and_b32 v{H_PV}, 31, v{H_PV}")
    e(f"v_cmp_le_u32 vcc, s74, v{H_PV}")
    e("s_nop 0")
    e("s_bcnt1_i32_b64 s78, vcc")
    if a.gain:
        e("s_bfe_i32 s77, s77, 0x30005")
        if a.emax < 3:
            e(f"s_min_i32 s77, s77, {a.emax}")
        e(f"s_mul_i32 s77, s77, {a.gain}")
        e("s_add_i32 s78, s78, s77")
    e(f"s_cmp_lt_i32 s78, {'s79' if a.par else a.thr - a.gain // 2}")
    e("s_cselect_b32 s78, 1, 0")
    e("v_mov_b32 v13, s78")
    e(f"ds_write_b32 v{V_CA}, v13 offset:4")
    if a.gain:
        e("s_and_b32 s76, s74, 1")
        e("s_or_b32 s76, s76, s57")
        e("s_cbranch_scc1 L_hrep")
        e("s_waitcnt lgkmcnt(0)")
        e("s_sub_i32 s71, s72, s73")
        e("s_max_i32 s71, s71, 0")
        e("s_min_i32 s71, s71, 7")
        e("s_add_i32 s71, s71, 4")
        e("s_and_b32 s71, s71, 7")
        e("s_lshl_b32 s71, s71, 5")
        e("s_lshl_b32 s73, s74, 2")
        e("s_sub_u32 s73, s73, 8")
        e("s_mov_b32 s72, 1")
        e("s_atomic_add s72, s[18:19], 0x80000 glc")
        g.lab("L_hrep")
    e("s_bitcmp1_b32 s75, 8")
    e("s_cbranch_scc0 L_hpoll")
    g.lab("L_hsm")
    for jj in range(8):
        e(f"ds_read_b128 {vr(H_T + jj*4, 4)}, v{V_L} offset:{L_KP + jj*1024}")
    e("s_waitcnt lgkmcnt(0)")
    for u in range(4):
        for m in range(4):
            e(f"v_cvt_pk_bf16_f32 v{H_KP + m*4 + u}, v{H_T + 2*u*4 + m}, v{H_T + (2*u+1)*4 + m}")
    e("s_waitcnt vmcnt(0)")
    S = H_S; X = H_S + 4; M = H_S + 8
    e("s_nop 0")
    for m in range(4):
        C = "0" if m == 0 else vr(S, 4)
        e(f"v_mfma_f32_16x16x32_bf16 {vr(S,4)}, {vr(H_KP+m*4,4)}, {vr(H_Q+m*4,4)}, {C}")
    e("s_nop 7")
    def rb(src):
        e(f"v_cvt_pk_bf16_f32 v{X}, v{src}, v{src+1}")
        e(f"v_cvt_pk_bf16_f32 v{X+1}, v{src+2}, v{src+3}")
        e(f"v_lshlrev_b32 v{src}, 16, v{X}")
        e(f"v_and_b32 v{src+1}, 0xffff0000, v{X}")
        e(f"v_lshlrev_b32 v{src+2}, 16, v{X+1}")
        e(f"v_and_b32 v{src+3}, 0xffff0000, v{X+1}")
    rb(S)
    for i in range(4):
        e(f"v_mul_f32 v{S+i}, s62, v{S+i}")
    rb(S)
    e(f"v_max_f32 v{M}, v{S}, v{S+1}")
    e(f"v_max3_f32 v{M}, v{S+2}, v{S+3}, v{M}")
    def xlane(op):
        e(f"v_mov_b32 v{M+1}, v{M}")
        e("s_nop 1")
        e(f"v_permlane32_swap_b32 v{M}, v{M+1}")
        e("s_nop 1")
        e(f"{op} v{M}, v{M}, v{M+1}")
        e(f"v_mov_b32 v{M+1}, v{M}")
        e("s_nop 1")
        e(f"v_permlane16_swap_b32 v{M}, v{M+1}")
        e("s_nop 1")
        e(f"{op} v{M}, v{M}, v{M+1}")
    xlane("v_max_f32")
    for i in range(4):
        e(f"v_sub_f32 v{S+i}, v{S+i}, v{M}")
    for i in range(4):
        e(f"v_mul_f32 v{S+i}, s63, v{S+i}")
    for i in range(4):
        e(f"v_exp_f32 v{S+i}, v{S+i}")
    e("s_nop 0")
    e(f"v_add_f32 v{M}, v{S}, v{S+1}")
    e(f"v_add_f32 v{M+2}, v{S+2}, v{S+3}")
    e(f"v_add_f32 v{M}, v{M}, v{M+2}")
    xlane("v_add_f32")
    e(f"v_rcp_f32 v{M}, v{M}")
    e("s_nop 0")
    for i in range(4):
        e(f"v_mul_f32 v{S+i}, v{S+i}, v{M}")
    e(f"v_cvt_pk_bf16_f32 v{H_S+12}, v{S}, v{S+1}")
    e(f"v_cvt_pk_bf16_f32 v{H_S+13}, v{S+2}, v{S+3}")
    e(f"v_lshlrev_b32 v12, 3, v0")
    e(f"ds_write_b64 v12, {vr(H_S+12,2)} offset:{L_P}")
    e(f"s_cmp_lt_u32 s74, {a.xend}")
    e("s_cbranch_scc1 L_hpoll")
    g.lab("L_hfin")
    e("s_bitcmp1_b32 s75, 8")
    e("s_mov_b32 s75, 0")
    e("s_cbranch_scc1 L_hsm")
    e("v_mov_b32 v13, 0")
    e(f"ds_write_b32 v{V_CA}, v13 offset:4")
    e("s_waitcnt lgkmcnt(0)")
    g.lab("L_end")
    e("s_endpgm")

    if a.hopv:
        i0 = L.index("; HOPV"); i1 = L.index("; HOPEND")
        out = []; cnt = a.hopv; n = 0
        for ln in L[i0+1:i1]:
            isinst = ln.startswith("    ") and not ln.strip().startswith((";", "."))
            if isinst:
                if cnt >= a.hopv:
                    out.append(f"L_hv{n}:")
                    out.append(f"    s_cbranch_execz L_hv{n+1}")
                    n += 1; cnt = 4
                cnt += isz(ln)
            out.append(ln)
        out = [x.replace(f"L_hv{n}", "L_hvdone") if x.endswith(f" L_hv{n}") else x for x in out]
        L[i0+1:i1] = out

    L.append('.section .rodata,"a"')
    L.append(".p2align 6")
    L.append(f".amdhsa_kernel {NAME}_kernel")
    L.append(f"  .amdhsa_next_free_vgpr {total}")
    L.append("  .amdhsa_next_free_sgpr 88")
    L.append(f"  .amdhsa_accum_offset {accum}")
    L.append("  .amdhsa_group_segment_fixed_size 0")
    L.append("  .amdhsa_kernarg_size 64")
    L.append("  .amdhsa_user_sgpr_count 2")
    L.append("  .amdhsa_user_sgpr_kernarg_segment_ptr 1")
    L.append("  .amdhsa_system_sgpr_workgroup_id_x 1")
    L.append("  .amdhsa_float_denorm_mode_32 3")
    L.append(".end_amdhsa_kernel")
    return "\n".join(L) + "\n"

if __name__ == "__main__":
    p = argparse.ArgumentParser()
    p.add_argument("--w", type=int, default=22)
    p.add_argument("--wt", type=int, default=19)
    p.add_argument("--tev", type=int, default=1)
    p.add_argument("--eu", type=int, default=0)
    p.add_argument("--rx0", type=int, default=0)
    p.add_argument("--m", type=int, default=2)
    p.add_argument("--ls", type=int, default=16)
    p.add_argument("--f1", type=int, default=1)
    p.add_argument("--f2", type=int, default=0)
    p.add_argument("--thr", type=int, default=18)
    p.add_argument("--par", type=int, default=0)
    p.add_argument("--gain", type=int, default=0)
    p.add_argument("--emax", type=int, default=3)
    p.add_argument("--swarm", type=int, default=0)
    p.add_argument("--kfirst", type=int, default=0)
    p.add_argument("--plast", type=int, default=0)
    p.add_argument("--dirbit", type=int, default=-1)
    p.add_argument("--late", type=int, default=0)
    p.add_argument("--xend", type=int, default=29)
    p.add_argument("--rdpos", type=int, default=6)
    p.add_argument("--sleep", type=int, default=1)
    p.add_argument("--hopv", type=int, default=256)
    p.add_argument("--pf", type=int, default=1)
    p.add_argument("--minlds", type=int, default=90000)
    p.add_argument("--stamps", type=int, default=0)
    p.add_argument("-o", default="/dev/stdout")
    a = p.parse_args()
    open(a.o, "w").write(gen(a))
```

```python
import sys, argparse, math
from gen import Gen, vr, ar, NAME, HEADER

DOC = """
;
;
"""

def isz(ln):
    op = ln.strip().split()[0]
    if op.startswith(("s_nop", "s_waitcnt", "s_cbranch", "s_branch", "s_barrier", "s_cmp", "s_cselect", "s_addc", "s_bcnt", "s_lshr", "s_lshl", "v_add_u32", "v_mov_b32", "v_cmp")):
        return 4
    return 8

def gen(a):
    g = Gen(a)
    W, RS, G = a.w, 32, 64
    assert W % 2 == 0 and W <= RS - 2
    V_KV, V_E, V_L, V_L8 = 1, 2, 3, 4
    V_CA, V_ONE, V_ST, V_P, V_F, V_CW = 5, 6, 7, 8, 10, 11
    V_ES, V_T = 12, 28
    V_BUF = V_T + 64
    V_AV = V_BUF + RS * 4
    vend = V_AV + 32
    A_K, A_E = 0, 32
    aend = 48
    accum = (vend + 3) // 4 * 4
    total = accum + aend
    S_D, S_E, S_B, S_Q, S_O = 20, 24, 28, 32, 36
    S_EO, S_EO7 = 42, 43
    S_R = 52
    S_SELLO, S_SELHI, S_CNT, S_HO, S_QO, S_VB = 44, 45, 46, 47, 48, 50
    L_KP, L_P, L_C = 0, 8192, 8704
    M_, LS = a.m, a.ls
    S_ = 1 << LS
    U_ = 8192 // M_
    LU = int(math.log2(U_))
    skip = (M_ * S_ - S_) if M_ > 1 else 0
    omask = 0x7ffff & ~skip & ~(U_ - 1)
    gps = S_ // U_ if M_ > 1 else 64

    L = g.L
    L.append(HEADER.rstrip("\n"))
    L.append(f"; @launch grid=(256,1,1) block=(128,1,1) lds={max(a.minlds, 9024)}")
    if a.doc:
        L.extend(DOC.strip("\n").split("\n"))
    L.append('.amdgcn_target "amdgcn-amd-amdhsa--gfx950"')
    L.append(".text")
    L.append(f".globl {NAME}_kernel")
    L.append(".p2align 12")
    L.append(".p2align 8")
    L.append(f".type {NAME}_kernel,@function")
    L.append(f"{NAME}_kernel:")
    e = g.e
    e("s_cmp_ge_u32 s2, 256")
    e("s_cbranch_scc1 L_end")
    if a.stamps:
        e("s_memrealtime s[60:61]")
    e("s_load_dwordx16 s[4:19], s[0:1], 0")
    e("v_readfirstlane_b32 s3, v0")
    e("v_and_b32 v0, 63, v0")
    e(f"v_mov_b32 v{V_CA}, {L_C}")
    e(f"v_mov_b32 v8, 0")
    e(f"v_mov_b32 v9, {0 if a.rx0 else 1}")
    e(f"ds_write_b64 v{V_CA}, v[8:9]")
    e("v_and_b32 v10, 15, v0")
    e("v_lshrrev_b32 v11, 4, v0")
    if M_ == 1:
        e(f"v_lshlrev_b32 v13, 11, v11")
    elif M_ == 4:
        e(f"v_lshlrev_b32 v13, {LS}, v11")
    else:
        e(f"v_lshrrev_b32 v13, 1, v11")
        e(f"v_lshlrev_b32 v13, {LS}, v13")
        e(f"v_and_b32 v12, 1, v11")
        e(f"v_lshl_add_u32 v13, v12, 11, v13")
    e(f"v_lshl_add_u32 v{V_KV}, v10, 4, v13")
    e(f"v_lshrrev_b32 v13, 7, v13")
    e(f"v_lshl_add_u32 v{V_E}, v10, 12, v13")
    e(f"v_lshlrev_b32 v{V_L}, 4, v0")
    if a.fakee:
        e(f"v_lshlrev_b32 v{V_E}, 4, v0")
    e(f"s_lshr_b32 s{S_EO}, s2, 3")
    if a.f1 != 1:
        e(f"s_mul_i32 s{S_EO}, s{S_EO}, {a.f1}")
    if a.f2:
        e("s_and_b32 s41, s2, 7")
        e(f"s_mul_i32 s41, s41, {a.f2}")
        e(f"s_add_u32 s{S_EO}, s{S_EO}, s41")
    if M_ > 1:
        e(f"s_lshr_b32 s41, s{S_EO}, {int(math.log2(gps))}")
        e(f"s_lshl_b32 s41, s41, {LS + int(math.log2(M_))}")
        e(f"s_and_b32 s{S_EO}, s{S_EO}, {gps - 1}")
        e(f"s_lshl_b32 s{S_EO}, s{S_EO}, {LU}")
        e(f"s_or_b32 s{S_EO}, s{S_EO}, s41")
    else:
        e(f"s_lshl_b32 s{S_EO}, s{S_EO}, {LU}")
    e(f"s_and_b32 s{S_R}, s{S_EO}, {omask}")
    if a.dirbit >= 0:
        e(f"s_bitcmp1_b32 s2, {a.dirbit}")
        e(f"s_cselect_b32 s56, 0, {skip}")
        e(f"s_movk_i32 s57, {U_}")
        e(f"s_cselect_b32 s57, {-U_}, s57")
    e(f"s_lshl_b32 s{S_HO}, s2, 19")
    e(f"s_mov_b32 s{S_D+2}, 0x80000")
    e(f"s_mov_b32 s{S_D+3}, 0x20000")
    e(f"s_lshr_b32 s{S_EO7}, s{S_R}, 7")
    e(f"s_mov_b32 s{S_E+2}, 0x10000")
    e(f"s_mov_b32 s{S_E+3}, 0x20000")
    e(f"s_lshl_b32 s{S_QO}, s2, 10")
    e(f"s_mov_b32 s{S_O+2}, 0x400")
    e(f"s_mov_b32 s{S_O+3}, 0x20000")
    e("s_cmp_ge_u32 s3, 64")
    e("s_waitcnt lgkmcnt(0)")
    if not a.late:
        e("s_barrier")
    e("s_cbranch_scc1 L_helper")
    def stamp():
        e("s_waitcnt lgkmcnt(0)")
        e(f"v_writelane_b32 v{V_ST}, s60, m0")
        e("s_memrealtime s[60:61]")
        e("s_add_u32 m0, m0, 1")
    if a.stamps:
        e(f"v_mov_b32 v{V_ST}, 0")
        e("s_mov_b32 m0, 0")
        e("s_nop 3")
        stamp()
    e(f"s_add_u32 s{S_D}, s6, s{S_HO}")
    e(f"s_addc_u32 s{S_D+1}, s7, 0")
    e(f"s_mov_b32 s{S_E}, s10")
    e(f"s_mov_b32 s{S_E+1}, s11")

    mode = {"m": "pro"}
    NR = 4
    def ring(t):
        return S_R + t % NR
    def mkoff(t):
        src, dst = ring(t - 1), ring(t)
        if a.dirbit >= 0:
            e(f"s_or_b32 s{dst}, s{src}, s56")
            e(f"s_add_u32 s{dst}, s{dst}, s57")
        elif skip:
            e(f"s_or_b32 s{dst}, s{src}, {skip}")
            e(f"s_add_u32 s{dst}, s{dst}, {U_}")
        else:
            e(f"s_add_u32 s{dst}, s{src}, {U_}")
        e(f"s_and_b32 s{dst}, s{dst}, {omask}")
        made["t"] = t
    made = {"t": 0}
    def issue_row(n):
        if n % 32 == 0 and n > 0:
            if mode["m"] == "K":
                e(f"s_cmp_eq_u32 s{S_CNT}, 15")
                e(f"s_cselect_b64 s[{S_D}:{S_D+1}], s[{S_VB}:{S_VB+1}], s[{S_D}:{S_D+1}]")
            elif mode["m"] == "V" and not a.plast:
                e(f"s_cmp_eq_u32 s{S_CNT}, 31")
                e(f"s_cselect_b32 s{S_D+2}, 0, s{S_D+2}")
        t, i = n // 8, n % 8
        assert made["t"] - NR < t <= made["t"], (t, made["t"])
        off = f" offset:{i*256}" if i else ""
        g.vm(f"buffer_load_dwordx4 {vr(V_BUF+(n%RS)*4,4)}, v{V_KV}, s[{S_D}:{S_D+3}], s{ring(t)} offen{off} {a.pol}", ("r", n))
    def issue_e(t, dst):
        if t % 4 == 0 and t > 0:
            if mode["m"] == "K":
                e(f"s_cmp_eq_u32 s{S_CNT}, 14")
                e(f"s_cselect_b64 s[{S_E}:{S_E+1}], s[12:13], s[{S_E}:{S_E+1}]")
            elif mode["m"] == "V" and not a.plast:
                e(f"s_cmp_eq_u32 s{S_CNT}, 30")
                e(f"s_cselect_b32 s{S_E+2}, 0, s{S_E+2}")
        if t > 0:
            mkoff(t)
            if a.noe:
                return
            e(f"s_lshr_b32 s{S_EO7}, s{ring(t)}, 7")
        g.vm(f"buffer_load_dwordx4 {dst}, v{V_E}, s[{S_E}:{S_E+3}], s{S_EO7} offen {a.epol}".rstrip(), ("e", t))

    if a.swarm:
        e(f"s_load_dword s80, s[{S_E}:{S_E+1}], 0")
        e(f"s_load_dword s81, s[{S_D}:{S_D+1}], 0")
    front = [(0, ar(A_E, 4)), (1, ar(A_E + 4, 4))]
    seq = []
    for t in range(-4, 0):
        for u in range(4):
            for k in range(2):
                n = t * 8 + 2 * u + W + k
                if n >= 0:
                    seq.append(("r", n))
            if u == a.eu:
                x = (t + 6, vr(V_ES + ((t + 6) % 4) * 4, 4))
                if seq:
                    seq.append(("e", x))
                else:
                    front.append(x)
    if a.kfirst:
        assert a.kfirst <= 2 * a.eu + 1 or len(front) == 2
        assert all(x[0] == "r" for x in seq[:a.kfirst])
    def emit_front():
        for x in front:
            issue_e(*x)
            if a.kfirst:
                g.q.pop()
    if not a.kfirst:
        emit_front()
    for x in seq:
        if x[0] == "r":
            issue_row(x[1])
            if a.kfirst and x[1] == a.kfirst - 1:
                emit_front()
        else:
            issue_e(*x[1])
    e(f"s_add_u32 s{S_VB}, s8, s{S_HO}")
    e(f"s_addc_u32 s{S_VB+1}, s9, 0")
    e(f"s_add_u32 s{S_O}, s14, s{S_QO}")
    e(f"s_addc_u32 s{S_O+1}, s15, 0")
    e(f"s_mov_b32 s{S_SELLO}, 0x05040100")
    e(f"s_mov_b32 s{S_SELHI}, 0x07060302")
    e(f"s_mov_b32 s{S_CNT}, 0")
    e(f"s_movk_i32 s41, {L_C}")
    e(f"v_lshlrev_b32 v{V_L8}, 3, v0")
    e(f"v_mov_b32 v{V_ONE}, 1")
    e(f"v_lshl_add_u32 v{V_CW}, v0, 2, v{V_CA}")
    e(f"v_add_u32 v{V_CW}, 4, v{V_CW}")
    e(f"v_writelane_b32 v{V_CW}, s41, 0")
    e(f"s_mov_b64 vcc, {0 if a.rx0 else -1}")
    Z = V_T
    for i in range(4):
        e(f"v_mov_b32 v{Z + i}, 0")
    e("s_nop 1")
    e(f"v_mfma_f32_16x16x32_bf16 {ar(A_E + 12, 4)}, {vr(Z,4)}, {vr(Z,4)}, 0")
    for d in (vr(V_T + 32, 16), vr(V_T + 48, 16), ar(A_K, 16), ar(A_K + 16, 16), vr(V_AV, 16), vr(V_AV + 16, 16)):
        e(f"v_mfma_f32_32x32x16_bf16 {d}, {vr(Z,4)}, {vr(Z,4)}, 0")
    e("s_nop 7")
    e("s_nop 4")
    if a.late:
        e("s_barrier")

    def mfma(t, jj):
        T = vr(V_T + (t % 2) * 32 + jj * 4, 4)
        E = ar(A_E + (t % 4) * 4, 4)
        if t < G:
            e(f"v_mfma_f32_16x16x32_bf16 {ar(A_K+jj*4,4)}, {T}, {E}, {ar(A_K+jj*4,4)}")
        else:
            e(f"v_mfma_f32_16x16x32_bf16 {vr(V_AV+jj*4,4)}, {E}, {T}, {vr(V_AV+jj*4,4)}")

    def step(t, peeled=False):
        g.c(f"--- step {t % 4}")
        for u in range(4):
            n0 = t * 8 + 2 * u
            if u % a.tev == 0:
                idx = g.q.index(("r", n0 + W - a.wt + 1))
                nt = len(g.q) - 1 - idx
                lb = f"L_rx{mode['m']}_{t%4}_{u}"
                e(f"s_cbranch_vccz {lb}")
                e(f"s_waitcnt vmcnt({nt})")
                g.lab(lb)
            g.wait_tag(("r", n0 + 1))
            issue_row(n0 + W)
            issue_row(n0 + W + 1)
            if u == a.eu:
                assert ("e", t + 2) not in g.q
                s = (t + 2) % 4
                for i in range(0 if a.noe else 4):
                    e(f"v_accvgpr_write_b32 a{A_E + s*4 + i}, v{V_ES + s*4 + i}")
                issue_e(t + 6, vr(V_ES + s * 4, 4))
            r0 = V_BUF + (n0 % RS) * 4
            r1 = V_BUF + ((n0 + 1) % RS) * 4
            for jj in range(8):
                tt, h = jj // 2, jj % 2
                sel = S_SELHI if h else S_SELLO
                if a.nocomp:
                    continue
                e(f"v_perm_b32 v{V_T + (t%2)*32 + jj*4 + u}, v{r1 + tt}, v{r0 + tt}, s{sel}")
                if jj in (3, 7):
                    mfma(t - 1, 2 * u + (1 if jj == 7 else 0))
            pos = (t % 4) * 4 + u
            per = 16 // a.ncp
            if pos % per == per - 1 and pos != 15:
                e(f"ds_add_u32 v{V_CW}, v{V_ONE}")
            if pos % per == a.rdpos % per:
                e(f"ds_read_b32 v{V_F}, v{V_CA} offset:4")
            if pos % per == (a.rdpos + 1) % per:
                e("s_waitcnt lgkmcnt(0)")
                e(f"v_cmp_ne_u32 vcc, 0, v{V_F}")
            if peeled and u >= 1:
                for jj in (2 * u - 2, 2 * u - 1):
                    e(f"ds_write_b128 v{V_L}, {ar(A_K+jj*4,4)} offset:{L_KP + jj*1024}")
        if peeled:
            e(f"v_lshlrev_b32 v9, 8, v{V_ONE}")
            e("s_nop 5")
            for jj in (6, 7):
                e(f"ds_write_b128 v{V_L}, {ar(A_K+jj*4,4)} offset:{L_KP + jj*1024}")
            e(f"ds_add_u32 v{V_CW}, v9")

    def body(t0, midlabel=None):
        for t in range(t0, t0 + 4):
            if midlabel and t == t0 + 1:
                g.lab(midlabel)
            step(t)
        e(f"ds_add_u32 v{V_CW}, v{V_ONE}")
        if a.stamps == 1:
            stamp()

    def loop(label, t0, m, last, midlabel=None):
        mode["m"] = m
        g.lab(label)
        start = len(L)
        body(t0, midlabel)
        txt0 = L[start:]
        del L[start:]
        body(t0 + 4, midlabel)
        assert txt0 == L[start:], "loop body not uniform"
        e(f"s_add_u32 s{S_CNT}, s{S_CNT}, 1")
        e(f"s_cmp_lt_u32 s{S_CNT}, {last}")
        e(f"s_cbranch_scc1 {label}")

    def shift(d):
        g.q = [(("r", x[1] + d * 8) if x[0] == "r" else ("e", x[1] + d)) if isinstance(x, tuple) else x for x in g.q]
        made["t"] += d

    g.c("================= K loop: 16 x 4 groups =================")
    loop("L_k", 0, "K", 16)
    g.c("first V group (finishes the last K group's MFMAs, publishes kp), then enters the V loop at step 1")
    L.append("; HOPV")
    shift(64 - 8)
    qsave, msave = list(g.q), made["t"]
    mode["m"] = "Vf"
    step(64, peeled=True)
    e("s_branch L_v1")
    g.q, made["t"] = qsave, msave
    shift(4)
    loop("L_v", 68, "V", 31 if a.plast else 32, midlabel="L_v1")
    if a.plast:
        shift(124 - 76)
        mode["m"] = "Vl"
        for t in range(124, 128):
            g.c(f"--- last body step {t % 4}")
            for u in range(4):
                n0 = t * 8 + 2 * u
                g.wait_tag(("r", n0 + 1))
                for k in range(2):
                    if n0 + W + k < 1024:
                        issue_row(n0 + W + k)
                if u == a.eu and t + 2 < 128:
                    assert ("e", t + 2) not in g.q
                    s_ = (t + 2) % 4
                    for i in range(4):
                        e(f"v_accvgpr_write_b32 a{A_E + s_*4 + i}, v{V_ES + s_*4 + i}")
                if t == 126 and u == 0:
                    e("s_barrier")
                    e(f"ds_read_b64 {vr(V_P,2)}, v{V_L8} offset:{L_P}")
                r0 = V_BUF + (n0 % RS) * 4
                r1 = V_BUF + ((n0 + 1) % RS) * 4
                fin = (t == 127 and u == 3)
                pend = []
                if t == 127:
                    pend = {0: [0, 1, 2], 1: [3, 4, 5], 2: [6, 7], 3: []}[u]
                for jj in range(8):
                    tt, h = jj // 2, jj % 2
                    sel = S_SELHI if h else S_SELLO
                    e(f"v_perm_b32 v{V_T + (t%2)*32 + jj*4 + u}, v{r1 + tt}, v{r0 + tt}, s{sel}")
                    if t < 127 and jj in (3, 7):
                        mfma(t - 1, 2 * u + (1 if jj == 7 else 0))
                    if t == 127 and jj in (2, 5, 7) and pend:
                        mfma(126, pend.pop(0))
                    if fin and jj >= 2:
                        mfma(127, jj - 2)
        if a.stamps == 1:
            stamp()
        e("s_waitcnt lgkmcnt(0)")
        mfma(127, 6)
        mfma(127, 7)
    else:
        e("s_barrier")
        e(f"ds_read_b64 {vr(V_P,2)}, v{V_L8} offset:{L_P}")
        for jj in range(8):
            mfma(127, jj)
        e("s_waitcnt lgkmcnt(0)")
    g.c("vp -> bf16, o = p vp")
    KP = V_T
    for jj in range(8):
        e(f"v_cvt_pk_bf16_f32 v{KP + jj*2}, v{V_AV + jj*4}, v{V_AV + jj*4 + 1}")
        e(f"v_cvt_pk_bf16_f32 v{KP + jj*2 + 1}, v{V_AV + jj*4 + 2}, v{V_AV + jj*4 + 3}")
        if jj >= 1:
            e(f"v_mfma_f32_16x16x16_bf16 {vr(V_AV + (jj-1)*4, 4)}, {vr(V_P,2)}, {vr(KP + (jj-1)*2, 2)}, 0")
    e("s_nop 1")
    e(f"v_mfma_f32_16x16x16_bf16 {vr(V_AV + 7*4, 4)}, {vr(V_P,2)}, {vr(KP + 7*2, 2)}, 0")
    X = V_T + 16
    for k in range(2):
        e(f"v_cvt_pk_bf16_f32 v{X + k}, v{V_AV + 2*k*4}, v{V_AV + (2*k+1)*4}")
    e("s_nop 0")
    e(f"v_cvt_pk_bf16_f32 v{X + 2}, v{V_AV + 4*4}, v{V_AV + 5*4}")
    e("s_nop 3")
    e(f"v_cvt_pk_bf16_f32 v{X + 3}, v{V_AV + 6*4}, v{V_AV + 7*4}")
    e(f"buffer_store_dwordx4 {vr(X,4)}, v{V_L}, s[{S_O}:{S_O+3}], 0 offen")
    L.append("; HOPEND")
    if a.stamps:
        e("s_waitcnt vmcnt(0)")
        stamp()
        stamp()
        e("s_getreg_b32 s64, hwreg(HW_REG_XCC_ID)")
        e("s_getreg_b32 s65, hwreg(HW_REG_HW_ID)")
        e(f"v_writelane_b32 v{V_ST}, s64, 62")
        e(f"v_writelane_b32 v{V_ST}, s65, 63")
        e("s_lshl_b32 s62, s2, 8")
        e("s_add_u32 s68, s18, s62")
        e("s_addc_u32 s69, s19, 0")
        e("s_mov_b32 s70, 256")
        e("s_mov_b32 s71, 0x20000")
        e("v_lshlrev_b32 v20, 2, v0")
        e(f"buffer_store_dword v{V_ST}, v20, s[68:71], 0 offen")
    e("s_endpgm")

    g.c("================= helper wave: q load, flow control, softmax =================")
    g.lab("L_helper")
    H_Q, H_KP, H_T, H_S = 16, 32, 48, 80
    H_RD, H_WR, H_PV, H_D = 96, 97, 98, 99
    if a.hopv:
        e(f"s_add_u32 s{S_D}, s6, s{S_HO}")
        e(f"s_addc_u32 s{S_D+1}, s7, 0")
        e(f"s_mov_b32 s{S_E}, s10")
        e(f"s_mov_b32 s{S_E+1}, s11")
        e(f"s_add_u32 s{S_O}, s14, s{S_QO}")
        e(f"s_addc_u32 s{S_O+1}, s15, 0")
    e(f"s_mov_b32 s{S_B}, s16")
    e(f"s_mov_b32 s{S_B+1}, s17")
    e(f"s_mov_b32 s{S_B+2}, 256")
    e(f"s_mov_b32 s{S_B+3}, 0x20000")
    if a.gain:
        e("s_cmp_lg_u32 s2, 0")
        e("s_cbranch_scc1 L_noclr")
        e("v_mov_b32 v12, 0x80000")
        e("v_mov_b32 v13, 0")
        e("s_mov_b64 exec, 1")
        e("global_store_dword v12, v13, s[18:19] sc0 sc1")
        e("s_mov_b64 exec, -1")
        g.lab("L_noclr")
    e("s_and_b32 s56, s2, 7")
    e("s_lshl_b32 s56, s56, 5")
    e("s_lshr_b32 s57, s2, 3")
    e("s_add_u32 s58, s56, s57")
    e(f"v_mov_b32 v{H_WR}, 0x1000")
    e(f"v_add_u32 v{H_RD}, s56, v0")
    e(f"v_cmp_gt_u32 vcc, 32, v0")
    e(f"s_add_u32 s{S_Q}, s4, s{S_QO}")
    e(f"s_addc_u32 s{S_Q+1}, s5, 0")
    e(f"v_cndmask_b32 v{H_RD}, v{H_WR}, v{H_RD}, vcc")
    e(f"v_writelane_b32 v{H_WR}, s58, 0")
    e(f"s_mov_b32 s{S_Q+2}, 0x400")
    e(f"s_mov_b32 s{S_Q+3}, 0x20000")
    e(f"v_lshrrev_b32 v14, 2, v10")
    e(f"v_lshlrev_b32 v14, 8, v14")
    e(f"v_lshl_add_u32 v14, v11, 6, v14")
    e(f"buffer_load_ubyte v{H_PV}, v{H_RD}, s[{S_B}:{S_B+3}], 0 offen nt")
    for m in range(4):
        off = f" offset:{m*16}" if m else ""
        e(f"buffer_load_dwordx4 {vr(H_Q+m*4,4)}, v14, s[{S_Q}:{S_Q+3}], 0 offen{off}")
    if a.pf:
        e("s_and_b32 s59, s57, 15")
        e("s_lshl_b32 s59, s59, 12")
        e("s_cmp_lt_u32 s57, 16")
        e("s_cselect_b64 s[64:65], s[10:11], s[12:13]")
        e("s_mov_b32 s66, 0x10000")
        e("s_mov_b32 s67, 0x20000")
        e("v_lshlrev_b32 v15, 6, v0")
        e(f"buffer_load_dword v13, v15, s[64:67], s59 offen")
    e("s_mov_b32 s62, 0x3db504f3")
    e("s_mov_b32 s63, 0x3fb8aa3b")
    e("s_mov_b32 s70, 0")
    if a.gain:
        e("s_mov_b32 s71, 0")
        e("s_mov_b32 s72, 4")
        e("s_mov_b32 s73, 0")
    if a.par:
        e("s_bitcmp1_b32 s2, 0")
        e(f"s_cselect_b32 s79, {a.thr + a.par - a.gain // 2}, {a.thr - a.par - a.gain // 2}")
    if a.late:
        e("s_barrier")
    if a.hopv:
        e("s_mov_b64 exec, 0")
        e("s_branch L_hv0")
        g.lab("L_hvdone")
        e("s_mov_b64 exec, -1")
    g.c("LDS word 0 of L_C: low byte = 32-KiB blocks finished by the streaming wave, bit 8 = kp published")
    g.lab("L_hpoll")
    e(f"ds_read_b32 v12, v{V_CA}")
    e("s_waitcnt lgkmcnt(0)")
    e("v_readfirstlane_b32 s74, v12")
    e("s_xor_b32 s75, s74, s70")
    e("s_cbranch_scc1 L_hchg")
    e(f"s_sleep {a.sleep}")
    e("s_branch L_hpoll")
    g.lab("L_hchg")
    e("s_mov_b32 s70, s74")
    e("s_and_b32 s74, s74, 0xff")
    e("s_and_b32 s76, s75, 0xff")
    e("s_cbranch_scc0 L_hsm")
    e(f"s_cmp_ge_u32 s74, {a.xend * a.ncp}")
    e("s_cbranch_scc1 L_hfin")
    e(f"v_mov_b32 v{H_D}, s74")
    e(f"buffer_load_ubyte v{H_PV}, v{H_RD}, s[{S_B}:{S_B+3}], 0 offen nt")
    if a.gain:
        e(f"v_or_b32 v{H_D}, s71, v{H_D}")
    e(f"buffer_store_byte v{H_D}, v{H_WR}, s[{S_B}:{S_B+3}], 0 offen")
    e("s_waitcnt vmcnt(1)")
    if a.gain:
        e(f"v_readlane_b32 s77, v{H_PV}, 0")
        e(f"v_and_b32 v{H_PV}, 31, v{H_PV}")
    e(f"v_cmp_le_u32 vcc, s74, v{H_PV}")
    e("s_nop 0")
    e("s_bcnt1_i32_b64 s78, vcc")
    if a.gain:
        e("s_bfe_i32 s77, s77, 0x30005")
        if a.emax < 3:
            e(f"s_min_i32 s77, s77, {a.emax}")
        e(f"s_mul_i32 s77, s77, {a.gain}")
        e("s_add_i32 s78, s78, s77")
    e(f"s_cmp_lt_i32 s78, {'s79' if a.par else a.thr - a.gain // 2}")
    e("s_cselect_b32 s78, 1, 0")
    e("v_mov_b32 v13, s78")
    e(f"ds_write_b32 v{V_CA}, v13 offset:4")
    if a.gain:
        e("s_and_b32 s76, s74, 1")
        e("s_or_b32 s76, s76, s57")
        e("s_cbranch_scc1 L_hrep")
        e("s_waitcnt lgkmcnt(0)")
        e("s_sub_i32 s71, s72, s73")
        e("s_max_i32 s71, s71, 0")
        e("s_min_i32 s71, s71, 7")
        e("s_add_i32 s71, s71, 4")
        e("s_and_b32 s71, s71, 7")
        e("s_lshl_b32 s71, s71, 5")
        e("s_lshl_b32 s73, s74, 2")
        e("s_sub_u32 s73, s73, 8")
        e("s_mov_b32 s72, 1")
        e("s_atomic_add s72, s[18:19], 0x80000 glc")
        g.lab("L_hrep")
    e("s_bitcmp1_b32 s75, 8")
    e("s_cbranch_scc0 L_hpoll")
    g.c("kp (f32) -> bf16, scores^T = kp q^T, bf16 roundings as in the reference, softmax over r")
    g.lab("L_hsm")
    for jj in range(8):
        e(f"ds_read_b128 {vr(H_T + jj*4, 4)}, v{V_L} offset:{L_KP + jj*1024}")
    e("s_waitcnt lgkmcnt(0)")
    for u in range(4):
        for m in range(4):
            e(f"v_cvt_pk_bf16_f32 v{H_KP + m*4 + u}, v{H_T + 2*u*4 + m}, v{H_T + (2*u+1)*4 + m}")
    e("s_waitcnt vmcnt(0)")
    S = H_S; X = H_S + 4; M = H_S + 8
    e("s_nop 0")
    for m in range(4):
        C = "0" if m == 0 else vr(S, 4)
        e(f"v_mfma_f32_16x16x32_bf16 {vr(S,4)}, {vr(H_KP+m*4,4)}, {vr(H_Q+m*4,4)}, {C}")
    e("s_nop 7")
    def rb(src):
        e(f"v_cvt_pk_bf16_f32 v{X}, v{src}, v{src+1}")
        e(f"v_cvt_pk_bf16_f32 v{X+1}, v{src+2}, v{src+3}")
        e(f"v_lshlrev_b32 v{src}, 16, v{X}")
        e(f"v_and_b32 v{src+1}, 0xffff0000, v{X}")
        e(f"v_lshlrev_b32 v{src+2}, 16, v{X+1}")
        e(f"v_and_b32 v{src+3}, 0xffff0000, v{X+1}")
    rb(S)
    for i in range(4):
        e(f"v_mul_f32 v{S+i}, s62, v{S+i}")
    rb(S)
    e(f"v_max_f32 v{M}, v{S}, v{S+1}")
    e(f"v_max3_f32 v{M}, v{S+2}, v{S+3}, v{M}")
    def xlane(op):
        e(f"v_mov_b32 v{M+1}, v{M}")
        e("s_nop 1")
        e(f"v_permlane32_swap_b32 v{M}, v{M+1}")
        e("s_nop 1")
        e(f"{op} v{M}, v{M}, v{M+1}")
        e(f"v_mov_b32 v{M+1}, v{M}")
        e("s_nop 1")
        e(f"v_permlane16_swap_b32 v{M}, v{M+1}")
        e("s_nop 1")
        e(f"{op} v{M}, v{M}, v{M+1}")
    xlane("v_max_f32")
    for i in range(4):
        e(f"v_sub_f32 v{S+i}, v{S+i}, v{M}")
    for i in range(4):
        e(f"v_mul_f32 v{S+i}, s63, v{S+i}")
    for i in range(4):
        e(f"v_exp_f32 v{S+i}, v{S+i}")
    e("s_nop 0")
    e(f"v_add_f32 v{M}, v{S}, v{S+1}")
    e(f"v_add_f32 v{M+2}, v{S+2}, v{S+3}")
    e(f"v_add_f32 v{M}, v{M}, v{M+2}")
    xlane("v_add_f32")
    e(f"v_rcp_f32 v{M}, v{M}")
    e("s_nop 0")
    for i in range(4):
        e(f"v_mul_f32 v{S+i}, v{S+i}, v{M}")
    e(f"v_cvt_pk_bf16_f32 v{H_S+12}, v{S}, v{S+1}")
    e(f"v_cvt_pk_bf16_f32 v{H_S+13}, v{S+2}, v{S+3}")
    e(f"v_lshlrev_b32 v12, 3, v0")
    e(f"ds_write_b64 v12, {vr(H_S+12,2)} offset:{L_P}")
    e(f"s_cmp_lt_u32 s74, {a.xend * a.ncp}")
    e("s_cbranch_scc1 L_hpoll")
    g.lab("L_hfin")
    e("s_bitcmp1_b32 s75, 8")
    e("s_mov_b32 s75, 0")
    e("s_cbranch_scc1 L_hsm")
    e("v_mov_b32 v13, 0")
    e(f"ds_write_b32 v{V_CA}, v13 offset:4")
    e("s_waitcnt lgkmcnt(0)")
    g.lab("L_end")
    e("s_endpgm")

    if a.hopv:
        i0 = L.index("; HOPV"); i1 = L.index("; HOPEND")
        out = []; cnt = a.hopv; n = 0
        for ln in L[i0+1:i1]:
            isinst = ln.startswith("    ") and not ln.strip().startswith((";", "."))
            if isinst:
                if cnt >= a.hopv:
                    out.append(f"L_hv{n}:")
                    out.append(f"    s_cbranch_execz L_hv{n+1}")
                    n += 1; cnt = 4
                cnt += isz(ln)
            out.append(ln)
        out = [x.replace(f"L_hv{n}", "L_hvdone") if x.endswith(f" L_hv{n}") else x for x in out]
        L[i0+1:i1] = out

    L.append('.section .rodata,"a"')
    L.append(".p2align 6")
    L.append(f".amdhsa_kernel {NAME}_kernel")
    L.append(f"  .amdhsa_next_free_vgpr {total}")
    L.append("  .amdhsa_next_free_sgpr 88")
    L.append(f"  .amdhsa_accum_offset {accum}")
    L.append("  .amdhsa_group_segment_fixed_size 0")
    L.append("  .amdhsa_kernarg_size 64")
    L.append("  .amdhsa_user_sgpr_count 2")
    L.append("  .amdhsa_user_sgpr_kernarg_segment_ptr 1")
    L.append("  .amdhsa_system_sgpr_workgroup_id_x 1")
    L.append("  .amdhsa_float_denorm_mode_32 3")
    L.append(".end_amdhsa_kernel")
    return "\n".join(L) + "\n"

if __name__ == "__main__":
    p = argparse.ArgumentParser()
    p.add_argument("--w", type=int, default=22)
    p.add_argument("--wt", type=int, default=19)
    p.add_argument("--tev", type=int, default=1)
    p.add_argument("--eu", type=int, default=0)
    p.add_argument("--rx0", type=int, default=0)
    p.add_argument("--m", type=int, default=2)
    p.add_argument("--ls", type=int, default=16)
    p.add_argument("--f1", type=int, default=1)
    p.add_argument("--f2", type=int, default=0)
    p.add_argument("--thr", type=int, default=18)
    p.add_argument("--par", type=int, default=0)
    p.add_argument("--gain", type=int, default=0)
    p.add_argument("--emax", type=int, default=3)
    p.add_argument("--swarm", type=int, default=0)
    p.add_argument("--kfirst", type=int, default=0)
    p.add_argument("--plast", type=int, default=0)
    p.add_argument("--dirbit", type=int, default=-1)
    p.add_argument("--late", type=int, default=0)
    p.add_argument("--ncp", type=int, default=1)
    p.add_argument("--pol", default="nt")
    p.add_argument("--epol", default="")
    p.add_argument("--noe", type=int, default=0)
    p.add_argument("--nocomp", type=int, default=0)
    p.add_argument("--fakee", type=int, default=0)
    p.add_argument("--doc", type=int, default=0)
    p.add_argument("--xend", type=int, default=29)
    p.add_argument("--rdpos", type=int, default=6)
    p.add_argument("--sleep", type=int, default=1)
    p.add_argument("--hopv", type=int, default=256)
    p.add_argument("--pf", type=int, default=1)
    p.add_argument("--minlds", type=int, default=90000)
    p.add_argument("--stamps", type=int, default=0)
    p.add_argument("-o", default="/dev/stdout")
    a = p.parse_args()
    open(a.o, "w").write(gen(a))
```

```python
import sys, argparse, math
from gen import Gen, vr, ar, NAME, HEADER

DOC = """
;
;
;   publishes the streaming wave's progress as one byte of d_debug, and selects the smaller load
"""

def isz(ln):
    op = ln.strip().split()[0]
    if op.startswith(("s_nop", "s_waitcnt", "s_cbranch", "s_branch", "s_barrier", "s_cmp", "s_cselect", "s_addc", "s_bcnt", "s_lshr", "s_lshl", "v_add_u32", "v_mov_b32", "v_cmp")):
        return 4
    return 8

def gen(a):
    g = Gen(a)
    W, RS, G = a.w, 32, 64
    assert W % 2 == 0 and W <= RS - 2
    V_KV, V_E, V_L, V_L8 = 1, 2, 3, 4
    V_CA, V_ONE, V_ST, V_P, V_F, V_CW = 5, 6, 7, 8, 10, 11
    V_ES, V_T = 12, 28
    V_BUF = V_T + 64
    V_AV = V_BUF + RS * 4
    vend = V_AV + 32
    A_K, A_E = 0, 32
    aend = 48
    accum = (vend + 3) // 4 * 4
    total = accum + aend
    S_D, S_E, S_B, S_Q, S_O = 20, 24, 28, 32, 36
    S_EO, S_EO7 = 42, 43
    S_R = 52
    S_SELLO, S_SELHI, S_CNT, S_HO, S_QO, S_VB = 44, 45, 46, 47, 48, 50
    L_KP, L_P, L_C = 0, 8192, 8704
    M_, LS = a.m, a.ls
    S_ = 1 << LS
    U_ = 8192 // M_
    LU = int(math.log2(U_))
    skip = (M_ * S_ - S_) if M_ > 1 else 0
    omask = 0x7ffff & ~skip & ~(U_ - 1)
    gps = S_ // U_ if M_ > 1 else 64

    L = g.L
    L.append(HEADER.rstrip("\n"))
    L.append(f"; @launch grid=(256,1,1) block=(128,1,1) lds={max(a.minlds, 9024)}")
    if a.doc:
        L.extend(DOC.strip("\n").split("\n"))
    L.append('.amdgcn_target "amdgcn-amd-amdhsa--gfx950"')
    L.append(".text")
    L.append(f".globl {NAME}_kernel")
    L.append(".p2align 12")
    L.append(".p2align 8")
    L.append(f".type {NAME}_kernel,@function")
    L.append(f"{NAME}_kernel:")
    e = g.e
    e("s_cmp_ge_u32 s2, 256")
    e("s_cbranch_scc1 L_end")
    if a.stamps:
        e("s_memrealtime s[60:61]")
    if a.probe:
        e("s_memrealtime s[90:91]")
        e("s_memrealtime s[92:93]")
    e("s_load_dwordx16 s[4:19], s[0:1], 0")
    e("v_readfirstlane_b32 s3, v0")
    e("v_and_b32 v0, 63, v0")
    e(f"v_mov_b32 v{V_CA}, {L_C}")
    e(f"v_mov_b32 v8, 0")
    e(f"v_mov_b32 v9, {0 if a.rx0 else 1}")
    e(f"ds_write_b64 v{V_CA}, v[8:9]")
    e("v_and_b32 v10, 15, v0")
    e("v_lshrrev_b32 v11, 4, v0")
    if M_ == 1:
        e(f"v_lshlrev_b32 v13, 11, v11")
    elif M_ == 4:
        e(f"v_lshlrev_b32 v13, {LS}, v11")
    else:
        e(f"v_lshrrev_b32 v13, 1, v11")
        e(f"v_lshlrev_b32 v13, {LS}, v13")
        e(f"v_and_b32 v12, 1, v11")
        e(f"v_lshl_add_u32 v13, v12, 11, v13")
    e(f"v_lshl_add_u32 v{V_KV}, v10, 4, v13")
    e(f"v_lshrrev_b32 v13, 7, v13")
    e(f"v_lshl_add_u32 v{V_E}, v10, 12, v13")
    e(f"v_lshlrev_b32 v{V_L}, 4, v0")
    if a.fakee:
        e(f"v_lshlrev_b32 v{V_E}, 4, v0")
    e(f"s_lshr_b32 s{S_EO}, s2, 3")
    if a.f1 != 1:
        e(f"s_mul_i32 s{S_EO}, s{S_EO}, {a.f1}")
    if a.f2:
        e("s_and_b32 s41, s2, 7")
        e(f"s_mul_i32 s41, s41, {a.f2}")
        e(f"s_add_u32 s{S_EO}, s{S_EO}, s41")
    if M_ > 1:
        e(f"s_lshr_b32 s41, s{S_EO}, {int(math.log2(gps))}")
        e(f"s_lshl_b32 s41, s41, {LS + int(math.log2(M_))}")
        e(f"s_and_b32 s{S_EO}, s{S_EO}, {gps - 1}")
        e(f"s_lshl_b32 s{S_EO}, s{S_EO}, {LU}")
        e(f"s_or_b32 s{S_EO}, s{S_EO}, s41")
    else:
        e(f"s_lshl_b32 s{S_EO}, s{S_EO}, {LU}")
    e(f"s_and_b32 s{S_R}, s{S_EO}, {omask}")
    if a.dirbit >= 0:
        e(f"s_bitcmp1_b32 s2, {a.dirbit}")
        e(f"s_cselect_b32 s56, 0, {skip}")
        e(f"s_movk_i32 s57, {U_}")
        e(f"s_cselect_b32 s57, {-U_}, s57")
    e(f"s_lshl_b32 s{S_HO}, s2, 19")
    e(f"s_mov_b32 s{S_D+2}, 0x80000")
    e(f"s_mov_b32 s{S_D+3}, 0x20000")
    e(f"s_lshr_b32 s{S_EO7}, s{S_R}, 7")
    e(f"s_mov_b32 s{S_E+2}, 0x10000")
    e(f"s_mov_b32 s{S_E+3}, 0x20000")
    e(f"s_lshl_b32 s{S_QO}, s2, 10")
    e(f"s_mov_b32 s{S_O+2}, 0x400")
    e(f"s_mov_b32 s{S_O+3}, 0x20000")
    e("s_cmp_ge_u32 s3, 64")
    e("s_waitcnt lgkmcnt(0)")
    if not a.late:
        e("s_barrier")
    e("s_cbranch_scc1 L_helper")
    def stamp():
        e("s_waitcnt lgkmcnt(0)")
        e(f"v_writelane_b32 v{V_ST}, s60, m0")
        e("s_memrealtime s[60:61]")
        e("s_add_u32 m0, m0, 1")
    if a.stamps:
        e(f"v_mov_b32 v{V_ST}, 0")
        e("s_mov_b32 m0, 0")
        e("s_nop 3")
        stamp()
    if a.probe and a.pa == 98:
        e("s_cmp_lg_u32 s2, 0")
        e("s_cbranch_scc1 L_pw")
        e("v_mov_b32 v20, s90")
        e("v_mov_b32 v21, 0x40000")
        e("global_store_dword v21, v20, s[18:19] sc0 sc1")
        g.lab("L_pw")
    if a.probe and a.pb == -1:
        e("s_memrealtime s[94:95]")
    if a.prio:
        e(f"s_setprio {a.prio}")
    if a.noepro:
        e("s_mov_b64 s[36:37], s[14:15]")
    e(f"s_add_u32 s{S_D}, s6, s{S_HO}")
    e(f"s_addc_u32 s{S_D+1}, s7, 0")
    e(f"s_mov_b32 s{S_E}, s10")
    e(f"s_mov_b32 s{S_E+1}, s11")

    mode = {"m": "pro"}
    NR = 4
    def ring(t):
        return S_R + t % NR
    def mkoff(t):
        src, dst = ring(t - 1), ring(t)
        if a.dirbit >= 0:
            e(f"s_or_b32 s{dst}, s{src}, s56")
            e(f"s_add_u32 s{dst}, s{dst}, s57")
        elif skip:
            e(f"s_or_b32 s{dst}, s{src}, {skip}")
            e(f"s_add_u32 s{dst}, s{dst}, {U_}")
        else:
            e(f"s_add_u32 s{dst}, s{src}, {U_}")
        e(f"s_and_b32 s{dst}, s{dst}, {omask}")
        made["t"] = t
    made = {"t": 0}
    def issue_row(n):
        if n % 32 == 0 and n > 0:
            if mode["m"] == "K":
                e(f"s_cmp_eq_u32 s{S_CNT}, 15")
                e(f"s_cselect_b64 s[{S_D}:{S_D+1}], s[{S_VB}:{S_VB+1}], s[{S_D}:{S_D+1}]")
            elif mode["m"] == "V" and not a.plast:
                e(f"s_cmp_eq_u32 s{S_CNT}, 31")
                e(f"s_cselect_b32 s{S_D+2}, 0, s{S_D+2}")
        t, i = n // 8, n % 8
        assert made["t"] - NR < t <= made["t"], (t, made["t"])
        off = f" offset:{i*256}" if i else ""
        g.vm(f"buffer_load_dwordx4 {vr(V_BUF+(n%RS)*4,4)}, v{V_KV}, s[{S_D}:{S_D+3}], s{ring(t)} offen{off} {a.pol}", ("r", n))
    def issue_e(t, dst):
        if t % 4 == 0 and t > 0:
            if mode["m"] == "K":
                e(f"s_cmp_eq_u32 s{S_CNT}, 14")
                e(f"s_cselect_b64 s[{S_E}:{S_E+1}], s[12:13], s[{S_E}:{S_E+1}]")
            elif mode["m"] == "V" and not a.plast:
                e(f"s_cmp_eq_u32 s{S_CNT}, 30")
                e(f"s_cselect_b32 s{S_E+2}, 0, s{S_E+2}")
        if t > 0:
            mkoff(t)
            if a.noe or (a.noepro == 1 and mode["m"] == "pro"):
                if a.noepro:
                    g.q.append(("e", t))
                    e("buffer_load_dword v9, v3, s[36:39], 0 offen offset:2048")
                return
            e(f"s_lshr_b32 s{S_EO7}, s{ring(t)}, 7")
        g.vm(f"buffer_load_dwordx4 {dst}, v{V_E}, s[{S_E}:{S_E+3}], s{S_EO7} offen {a.epol}".rstrip(), ("e", t))

    if a.swarm:
        e(f"s_load_dword s80, s[{S_E}:{S_E+1}], 0")
        e(f"s_load_dword s81, s[{S_D}:{S_D+1}], 0")
    front = [(0, ar(A_E, 4)), (1, ar(A_E + 4, 4))]
    seq = []
    for t in range(-4, 0):
        for u in range(4):
            for k in range(2):
                n = t * 8 + 2 * u + W + k
                if n >= 0:
                    seq.append(("r", n))
            if u == a.eu:
                x = (t + 6, vr(V_ES + ((t + 6) % 4) * 4, 4))
                if seq:
                    seq.append(("e", x))
                else:
                    front.append(x)
    if a.kfirst:
        assert a.kfirst <= 2 * a.eu + 1 or len(front) == 2
        assert all(x[0] == "r" for x in seq[:a.kfirst])
    def emit_front():
        for x in front:
            issue_e(*x)
            if a.kfirst:
                g.q.pop()
    if not a.kfirst:
        emit_front()
    for x in seq:
        if x[0] == "r":
            issue_row(x[1])
            if a.kfirst and x[1] == a.kfirst - 1:
                emit_front()
        else:
            issue_e(*x[1])
    e(f"s_add_u32 s{S_VB}, s8, s{S_HO}")
    e(f"s_addc_u32 s{S_VB+1}, s9, 0")
    e(f"s_add_u32 s{S_O}, s14, s{S_QO}")
    e(f"s_addc_u32 s{S_O+1}, s15, 0")
    e(f"s_mov_b32 s{S_SELLO}, 0x05040100")
    e(f"s_mov_b32 s{S_SELHI}, 0x07060302")
    e(f"s_mov_b32 s{S_CNT}, 0")
    e(f"s_movk_i32 s41, {L_C}")
    e(f"v_lshlrev_b32 v{V_L8}, 3, v0")
    e(f"v_mov_b32 v{V_ONE}, 1")
    e(f"v_lshl_add_u32 v{V_CW}, v0, 2, v{V_CA}")
    e(f"v_add_u32 v{V_CW}, 4, v{V_CW}")
    e(f"v_writelane_b32 v{V_CW}, s41, 0")
    e(f"s_mov_b64 vcc, {0 if a.rx0 else -1}")
    Z = V_T
    for i in range(4):
        e(f"v_mov_b32 v{Z + i}, 0")
    e("s_nop 1")
    e(f"v_mfma_f32_16x16x32_bf16 {ar(A_E + 12, 4)}, {vr(Z,4)}, {vr(Z,4)}, 0")
    for d in (vr(V_T + 32, 16), vr(V_T + 48, 16), ar(A_K, 16), ar(A_K + 16, 16), vr(V_AV, 16), vr(V_AV + 16, 16)):
        e(f"v_mfma_f32_32x32x16_bf16 {d}, {vr(Z,4)}, {vr(Z,4)}, 0")
    e("s_nop 7")
    e("s_nop 4")
    if a.late:
        e("s_barrier")

    def mfma(t, jj):
        T = vr(V_T + (t % 2) * 32 + jj * 4, 4)
        E = ar(A_E + (t % 4) * 4, 4)
        if t < G:
            e(f"v_mfma_f32_16x16x32_bf16 {ar(A_K+jj*4,4)}, {T}, {E}, {ar(A_K+jj*4,4)}")
        else:
            e(f"v_mfma_f32_16x16x32_bf16 {vr(V_AV+jj*4,4)}, {E}, {T}, {vr(V_AV+jj*4,4)}")

    def step(t, peeled=False):
        g.c(f"--- step {t % 4}")
        for u in range(4):
            n0 = t * 8 + 2 * u
            if u % a.tev == 0:
                idx = g.q.index(("r", n0 + W - a.wt + 1))
                nt = len(g.q) - 1 - idx
                lb = f"L_rx{mode['m']}_{t%4}_{u}"
                e(f"s_cbranch_vccz {lb}")
                e(f"s_waitcnt vmcnt({nt})")
                g.lab(lb)
            g.wait_tag(("r", n0 + 1))
            issue_row(n0 + W)
            issue_row(n0 + W + 1)
            if u == a.eu:
                assert ("e", t + 2) not in g.q
                s = (t + 2) % 4
                for i in range(0 if a.noe else 4):
                    e(f"v_accvgpr_write_b32 a{A_E + s*4 + i}, v{V_ES + s*4 + i}")
                issue_e(t + 6, vr(V_ES + s * 4, 4))
            r0 = V_BUF + (n0 % RS) * 4
            r1 = V_BUF + ((n0 + 1) % RS) * 4
            for jj in range(8):
                tt, h = jj // 2, jj % 2
                sel = S_SELHI if h else S_SELLO
                if a.nocomp:
                    continue
                e(f"v_perm_b32 v{V_T + (t%2)*32 + jj*4 + u}, v{r1 + tt}, v{r0 + tt}, s{sel}")
                if jj in (3, 7):
                    mfma(t - 1, 2 * u + (1 if jj == 7 else 0))
            pos = (t % 4) * 4 + u
            per = 16 // a.ncp
            if pos % per == per - 1 and pos != 15:
                e(f"ds_add_u32 v{V_CW}, v{V_ONE}")
            if pos % per == a.rdpos % per:
                e(f"ds_read_b32 v{V_F}, v{V_CA} offset:4")
            if pos % per == (a.rdpos + 1) % per:
                e("s_waitcnt lgkmcnt(0)")
                e(f"v_cmp_ne_u32 vcc, 0, v{V_F}")
            if peeled and u >= 1:
                for jj in (2 * u - 2, 2 * u - 1):
                    e(f"ds_write_b128 v{V_L}, {ar(A_K+jj*4,4)} offset:{L_KP + jj*1024}")
        if peeled:
            e(f"v_lshlrev_b32 v9, 8, v{V_ONE}")
            e("s_nop 5")
            for jj in (6, 7):
                e(f"ds_write_b128 v{V_L}, {ar(A_K+jj*4,4)} offset:{L_KP + jj*1024}")
            e(f"ds_add_u32 v{V_CW}, v9")

    def body(t0, midlabel=None):
        for t in range(t0, t0 + 4):
            if midlabel and t == t0 + 1:
                g.lab(midlabel)
            step(t)
        e(f"ds_add_u32 v{V_CW}, v{V_ONE}")
        if a.stamps == 1:
            stamp()

    def loop(label, t0, m, last, midlabel=None):
        mode["m"] = m
        g.lab(label)
        start = len(L)
        body(t0, midlabel)
        txt0 = L[start:]
        del L[start:]
        body(t0 + 4, midlabel)
        assert txt0 == L[start:], "loop body not uniform"
        if a.probe:
            e(f"s_cmp_lg_u32 s{S_CNT}, {a.pa}")
            e(f"s_cbranch_scc1 L_pa{m}")
            e("s_memrealtime s[92:93]")
            g.lab(f"L_pa{m}")
            e(f"s_cmp_lg_u32 s{S_CNT}, {a.pb}")
            e(f"s_cbranch_scc1 L_pb{m}")
            e("s_memrealtime s[94:95]")
            g.lab(f"L_pb{m}")
        e(f"s_add_u32 s{S_CNT}, s{S_CNT}, 1")
        e(f"s_cmp_lt_u32 s{S_CNT}, {last}")
        e(f"s_cbranch_scc1 {label}")

    def shift(d):
        g.q = [(("r", x[1] + d * 8) if x[0] == "r" else ("e", x[1] + d)) if isinstance(x, tuple) else x for x in g.q]
        made["t"] += d

    g.c("================= K loop: 16 x 4 groups =================")
    loop("L_k", 0, "K", 16)
    g.c("first V group (finishes the last K group's MFMAs, publishes kp), then enters the V loop at step 1")
    L.append("; HOPV")
    shift(64 - 8)
    qsave, msave = list(g.q), made["t"]
    mode["m"] = "Vf"
    step(64, peeled=True)
    e("s_branch L_v1")
    g.q, made["t"] = qsave, msave
    shift(4)
    loop("L_v", 68, "V", 31 if a.plast else 32, midlabel="L_v1")
    if a.plast:
        shift(124 - 76)
        mode["m"] = "Vl"
        nl = {"n": 992 + W}
        for t in range(124, 128):
            g.c(f"--- last body step {t % 4}")
            for u in range(4):
                n0 = t * 8 + 2 * u
                if a.burst == 1 and t == 124 and u == 0:
                    for n in range(n0 + W, 1024):
                        issue_row(n)
                g.wait_tag(("r", n0 + 1))
                if a.burst == 2:
                    while nl["n"] < 1024 and nl["n"] < n0 + W + 2 + 2 * (4 * (t - 124) + u + 1):
                        issue_row(nl["n"]); nl["n"] += 1
                for k in range(2):
                    if n0 + W + k < 1024 and not a.burst:
                        issue_row(n0 + W + k)
                if u == a.eu and t + 2 < 128:
                    assert ("e", t + 2) not in g.q
                    s_ = (t + 2) % 4
                    for i in range(4):
                        e(f"v_accvgpr_write_b32 a{A_E + s_*4 + i}, v{V_ES + s_*4 + i}")
                if t == 126 and u == 0:
                    e("s_barrier")
                    e(f"ds_read_b64 {vr(V_P,2)}, v{V_L8} offset:{L_P}")
                r0 = V_BUF + (n0 % RS) * 4
                r1 = V_BUF + ((n0 + 1) % RS) * 4
                fin = (t == 127 and u == 3)
                pend = []
                if t == 127:
                    pend = {0: [0, 1, 2], 1: [3, 4, 5], 2: [6, 7], 3: []}[u]
                for jj in range(8):
                    tt, h = jj // 2, jj % 2
                    sel = S_SELHI if h else S_SELLO
                    e(f"v_perm_b32 v{V_T + (t%2)*32 + jj*4 + u}, v{r1 + tt}, v{r0 + tt}, s{sel}")
                    if t < 127 and jj in (3, 7):
                        mfma(t - 1, 2 * u + (1 if jj == 7 else 0))
                    if t == 127 and jj in (2, 5, 7) and pend:
                        mfma(126, pend.pop(0))
                    if fin and jj >= 2:
                        mfma(127, jj - 2)
        if a.stamps == 1:
            stamp()
        e("s_waitcnt lgkmcnt(0)")
        mfma(127, 6)
        mfma(127, 7)
    else:
        e("s_barrier")
        e(f"ds_read_b64 {vr(V_P,2)}, v{V_L8} offset:{L_P}")
        for jj in range(8):
            mfma(127, jj)
        e("s_waitcnt lgkmcnt(0)")
    g.c("vp -> bf16, o = p vp")
    KP = V_T
    for jj in range(8):
        e(f"v_cvt_pk_bf16_f32 v{KP + jj*2}, v{V_AV + jj*4}, v{V_AV + jj*4 + 1}")
        e(f"v_cvt_pk_bf16_f32 v{KP + jj*2 + 1}, v{V_AV + jj*4 + 2}, v{V_AV + jj*4 + 3}")
        if jj >= 1:
            e(f"v_mfma_f32_16x16x16_bf16 {vr(V_AV + (jj-1)*4, 4)}, {vr(V_P,2)}, {vr(KP + (jj-1)*2, 2)}, 0")
    e("s_nop 1")
    e(f"v_mfma_f32_16x16x16_bf16 {vr(V_AV + 7*4, 4)}, {vr(V_P,2)}, {vr(KP + 7*2, 2)}, 0")
    X = V_T + 16
    for k in range(2):
        e(f"v_cvt_pk_bf16_f32 v{X + k}, v{V_AV + 2*k*4}, v{V_AV + (2*k+1)*4}")
    e("s_nop 0")
    e(f"v_cvt_pk_bf16_f32 v{X + 2}, v{V_AV + 4*4}, v{V_AV + 5*4}")
    e("s_nop 3")
    e(f"v_cvt_pk_bf16_f32 v{X + 3}, v{V_AV + 6*4}, v{V_AV + 7*4}")
    e(f"buffer_store_dwordx4 {vr(X,4)}, v{V_L}, s[{S_O}:{S_O+3}], 0 offen")
    L.append("; HOPEND")
    if a.probe:
        if a.pb == 100:
            e("s_waitcnt vmcnt(0)")
            e("s_memrealtime s[94:95]")
        if a.pa == 98:
            e("v_mov_b32 v21, 0x40000")
            e("global_load_dword v20, v21, s[18:19] sc0 sc1")
            e("s_waitcnt vmcnt(0)")
            e("v_readfirstlane_b32 s92, v20")
        e("s_waitcnt lgkmcnt(0)")
        e("s_sub_u32 s96, s94, s92")
        e(f"s_mul_i32 s96, s96, {a.probe}")
        e("s_add_u32 s96, s96, 6000")
        g.lab("L_pspin")
        e("s_sleep 1")
        e("s_memrealtime s[94:95]")
        e("s_waitcnt lgkmcnt(0)")
        e("s_sub_u32 s97, s94, s90")
        e("s_cmp_lt_u32 s97, s96")
        e("s_cbranch_scc1 L_pspin")
    if a.stamps:
        e("s_waitcnt vmcnt(0)")
        stamp()
        stamp()
        e("s_getreg_b32 s64, hwreg(HW_REG_XCC_ID)")
        e("s_getreg_b32 s65, hwreg(HW_REG_HW_ID)")
        e(f"v_writelane_b32 v{V_ST}, s64, 62")
        e(f"v_writelane_b32 v{V_ST}, s65, 63")
        e("s_lshl_b32 s62, s2, 8")
        e("s_add_u32 s68, s18, s62")
        e("s_addc_u32 s69, s19, 0")
        e("s_mov_b32 s70, 256")
        e("s_mov_b32 s71, 0x20000")
        e("v_lshlrev_b32 v20, 2, v0")
        e(f"buffer_store_dword v{V_ST}, v20, s[68:71], 0 offen")
    e("s_endpgm")

    g.c("================= helper wave: q load, flow control, softmax =================")
    g.lab("L_helper")
    H_Q, H_KP, H_T, H_S = 16, 32, 48, 80
    H_RD, H_WR, H_PV, H_D = 96, 97, 98, 99
    if a.hopv:
        e(f"s_add_u32 s{S_D}, s6, s{S_HO}")
        e(f"s_addc_u32 s{S_D+1}, s7, 0")
        e(f"s_mov_b32 s{S_E}, s10")
        e(f"s_mov_b32 s{S_E+1}, s11")
        e(f"s_add_u32 s{S_O}, s14, s{S_QO}")
        e(f"s_addc_u32 s{S_O+1}, s15, 0")
    e(f"s_mov_b32 s{S_B}, s16")
    e(f"s_mov_b32 s{S_B+1}, s17")
    e(f"s_mov_b32 s{S_B+2}, 256")
    e(f"s_mov_b32 s{S_B+3}, 0x20000")
    if a.gain:
        e("s_cmp_lg_u32 s2, 0")
        e("s_cbranch_scc1 L_noclr")
        e("v_mov_b32 v12, 0x80000")
        e("v_mov_b32 v13, 0")
        e("s_mov_b64 exec, 1")
        e("global_store_dword v12, v13, s[18:19] sc0 sc1")
        e("s_mov_b64 exec, -1")
        g.lab("L_noclr")
    e("s_and_b32 s56, s2, 7")
    e("s_lshl_b32 s56, s56, 5")
    e("s_lshr_b32 s57, s2, 3")
    e("s_add_u32 s58, s56, s57")
    e(f"v_mov_b32 v{H_WR}, 0x1000")
    e(f"v_add_u32 v{H_RD}, s56, v0")
    e(f"v_cmp_gt_u32 vcc, 32, v0")
    e(f"s_add_u32 s{S_Q}, s4, s{S_QO}")
    e(f"s_addc_u32 s{S_Q+1}, s5, 0")
    e(f"v_cndmask_b32 v{H_RD}, v{H_WR}, v{H_RD}, vcc")
    e(f"v_writelane_b32 v{H_WR}, s58, 0")
    e(f"s_mov_b32 s{S_Q+2}, 0x400")
    e(f"s_mov_b32 s{S_Q+3}, 0x20000")
    e(f"v_lshrrev_b32 v14, 2, v10")
    e(f"v_lshlrev_b32 v14, 8, v14")
    e(f"v_lshl_add_u32 v14, v11, 6, v14")
    e(f"buffer_load_ubyte v{H_PV}, v{H_RD}, s[{S_B}:{S_B+3}], 0 offen nt")
    for m in range(4):
        off = f" offset:{m*16}" if m else ""
        e(f"buffer_load_dwordx4 {vr(H_Q+m*4,4)}, v14, s[{S_Q}:{S_Q+3}], 0 offen{off}")
    if a.pf:
        e("s_and_b32 s59, s57, 15")
        e("s_lshl_b32 s59, s59, 12")
        e("s_cmp_lt_u32 s57, 16")
        e("s_cselect_b64 s[64:65], s[10:11], s[12:13]")
        e("s_mov_b32 s66, 0x10000")
        e("s_mov_b32 s67, 0x20000")
        e("v_lshlrev_b32 v15, 6, v0")
        e(f"buffer_load_dword v13, v15, s[64:67], s59 offen")
    if a.warm:
        e(f"s_add_u32 s68, s8, s{S_HO}")
        e(f"s_addc_u32 s69, s9, 0")
        e("v_mov_b32 v15, 0")
        if a.warm & 1: e("global_load_dword v13, v15, s[68:69]")
        if a.warm & 2: e("global_load_dword v13, v15, s[12:13]")
        if a.warm & 4:
            e(f"s_add_u32 s68, s14, s{S_QO}")
            e(f"s_addc_u32 s69, s15, 0")
            e("global_load_dword v13, v15, s[68:69]")
    e("s_mov_b32 s62, 0x3db504f3")
    e("s_mov_b32 s63, 0x3fb8aa3b")
    e("s_mov_b32 s70, 0")
    if a.gain:
        e("s_mov_b32 s71, 0")
        e("s_mov_b32 s72, 4")
        e("s_mov_b32 s73, 0")
    if a.par:
        e("s_bitcmp1_b32 s2, 0")
        e(f"s_cselect_b32 s79, {a.thr + a.par - a.gain // 2}, {a.thr - a.par - a.gain // 2}")
    if a.late:
        e("s_barrier")
    if a.hopv:
        e("s_mov_b64 exec, 0")
        e("s_branch L_hv0")
        g.lab("L_hvdone")
        e("s_mov_b64 exec, -1")
    g.c("LDS word 0 of L_C: low byte = 32-KiB blocks finished by the streaming wave, bit 8 = kp published")
    g.lab("L_hpoll")
    e(f"ds_read_b32 v12, v{V_CA}")
    e("s_waitcnt lgkmcnt(0)")
    e("v_readfirstlane_b32 s74, v12")
    e("s_xor_b32 s75, s74, s70")
    e("s_cbranch_scc1 L_hchg")
    e(f"s_sleep {a.sleep}")
    e("s_branch L_hpoll")
    g.lab("L_hchg")
    e("s_mov_b32 s70, s74")
    e("s_and_b32 s74, s74, 0xff")
    e("s_and_b32 s76, s75, 0xff")
    e("s_cbranch_scc0 L_hsm")
    e(f"s_cmp_ge_u32 s74, {a.xend * a.ncp}")
    e("s_cbranch_scc1 L_hfin")
    e(f"v_mov_b32 v{H_D}, s74")
    e(f"buffer_load_ubyte v{H_PV}, v{H_RD}, s[{S_B}:{S_B+3}], 0 offen nt")
    if a.gain:
        e(f"v_or_b32 v{H_D}, s71, v{H_D}")
    e(f"buffer_store_byte v{H_D}, v{H_WR}, s[{S_B}:{S_B+3}], 0 offen")
    e("s_waitcnt vmcnt(1)")
    if a.gain:
        e(f"v_readlane_b32 s77, v{H_PV}, 0")
        e(f"v_and_b32 v{H_PV}, 31, v{H_PV}")
    e(f"v_cmp_le_u32 vcc, s74, v{H_PV}")
    e("s_nop 0")
    e("s_bcnt1_i32_b64 s78, vcc")
    if a.gain:
        e("s_bfe_i32 s77, s77, 0x30005")
        if a.emax < 3:
            e(f"s_min_i32 s77, s77, {a.emax}")
        e(f"s_mul_i32 s77, s77, {a.gain}")
        e("s_add_i32 s78, s78, s77")
    e(f"s_cmp_lt_i32 s78, {'s79' if a.par else a.thr - a.gain // 2}")
    e("s_cselect_b32 s78, 1, 0")
    e("v_mov_b32 v13, s78")
    e(f"ds_write_b32 v{V_CA}, v13 offset:4")
    if a.gain:
        e("s_and_b32 s76, s74, 1")
        e("s_or_b32 s76, s76, s57")
        e("s_cbranch_scc1 L_hrep")
        e("s_waitcnt lgkmcnt(0)")
        e("s_sub_i32 s71, s72, s73")
        e("s_max_i32 s71, s71, 0")
        e("s_min_i32 s71, s71, 7")
        e("s_add_i32 s71, s71, 4")
        e("s_and_b32 s71, s71, 7")
        e("s_lshl_b32 s71, s71, 5")
        e("s_lshl_b32 s73, s74, 2")
        e("s_sub_u32 s73, s73, 8")
        e("s_mov_b32 s72, 1")
        e("s_atomic_add s72, s[18:19], 0x80000 glc")
        g.lab("L_hrep")
    e("s_bitcmp1_b32 s75, 8")
    e("s_cbranch_scc0 L_hpoll")
    g.c("kp (f32) -> bf16, scores^T = kp q^T, bf16 roundings as in the reference, softmax over r")
    g.lab("L_hsm")
    for jj in range(8):
        e(f"ds_read_b128 {vr(H_T + jj*4, 4)}, v{V_L} offset:{L_KP + jj*1024}")
    e("s_waitcnt lgkmcnt(0)")
    for u in range(4):
        for m in range(4):
            e(f"v_cvt_pk_bf16_f32 v{H_KP + m*4 + u}, v{H_T + 2*u*4 + m}, v{H_T + (2*u+1)*4 + m}")
    e("s_waitcnt vmcnt(0)")
    S = H_S; X = H_S + 4; M = H_S + 8
    e("s_nop 0")
    for m in range(4):
        C = "0" if m == 0 else vr(S, 4)
        e(f"v_mfma_f32_16x16x32_bf16 {vr(S,4)}, {vr(H_KP+m*4,4)}, {vr(H_Q+m*4,4)}, {C}")
    e("s_nop 7")
    def rb(src):
        e(f"v_cvt_pk_bf16_f32 v{X}, v{src}, v{src+1}")
        e(f"v_cvt_pk_bf16_f32 v{X+1}, v{src+2}, v{src+3}")
        e(f"v_lshlrev_b32 v{src}, 16, v{X}")
        e(f"v_and_b32 v{src+1}, 0xffff0000, v{X}")
        e(f"v_lshlrev_b32 v{src+2}, 16, v{X+1}")
        e(f"v_and_b32 v{src+3}, 0xffff0000, v{X+1}")
    rb(S)
    for i in range(4):
        e(f"v_mul_f32 v{S+i}, s62, v{S+i}")
    rb(S)
    e(f"v_max_f32 v{M}, v{S}, v{S+1}")
    e(f"v_max3_f32 v{M}, v{S+2}, v{S+3}, v{M}")
    def xlane(op):
        e(f"v_mov_b32 v{M+1}, v{M}")
        e("s_nop 1")
        e(f"v_permlane32_swap_b32 v{M}, v{M+1}")
        e("s_nop 1")
        e(f"{op} v{M}, v{M}, v{M+1}")
        e(f"v_mov_b32 v{M+1}, v{M}")
        e("s_nop 1")
        e(f"v_permlane16_swap_b32 v{M}, v{M+1}")
        e("s_nop 1")
        e(f"{op} v{M}, v{M}, v{M+1}")
    xlane("v_max_f32")
    for i in range(4):
        e(f"v_sub_f32 v{S+i}, v{S+i}, v{M}")
    for i in range(4):
        e(f"v_mul_f32 v{S+i}, s63, v{S+i}")
    for i in range(4):
        e(f"v_exp_f32 v{S+i}, v{S+i}")
    e("s_nop 0")
    e(f"v_add_f32 v{M}, v{S}, v{S+1}")
    e(f"v_add_f32 v{M+2}, v{S+2}, v{S+3}")
    e(f"v_add_f32 v{M}, v{M}, v{M+2}")
    xlane("v_add_f32")
    e(f"v_rcp_f32 v{M}, v{M}")
    e("s_nop 0")
    for i in range(4):
        e(f"v_mul_f32 v{S+i}, v{S+i}, v{M}")
    e(f"v_cvt_pk_bf16_f32 v{H_S+12}, v{S}, v{S+1}")
    e(f"v_cvt_pk_bf16_f32 v{H_S+13}, v{S+2}, v{S+3}")
    e(f"v_lshlrev_b32 v12, 3, v0")
    e(f"ds_write_b64 v12, {vr(H_S+12,2)} offset:{L_P}")
    e(f"s_cmp_lt_u32 s74, {a.xend * a.ncp}")
    e("s_cbranch_scc1 L_hpoll")
    g.lab("L_hfin")
    e("s_bitcmp1_b32 s75, 8")
    e("s_mov_b32 s75, 0")
    e("s_cbranch_scc1 L_hsm")
    e("v_mov_b32 v13, 0")
    e(f"ds_write_b32 v{V_CA}, v13 offset:4")
    e("s_waitcnt lgkmcnt(0)")
    if a.clean:
        e("s_cmp_lg_u32 s57, 0")
        e("s_cbranch_scc1 L_end")
        if a.clean == 1:
            e(f"buffer_store_byte v{H_D}, v{H_WR}, s[{S_B}:{S_B+3}], 0 offen sc1")
        elif a.clean == 2:
            e(f"buffer_store_byte v{H_D}, v{H_WR}, s[{S_B}:{S_B+3}], 0 offen sc0 sc1")
        else:
            e("buffer_wbl2 sc1")
    g.lab("L_end")
    e("s_endpgm")

    if a.hopv:
        i0 = L.index("; HOPV"); i1 = L.index("; HOPEND")
        out = []; cnt = a.hopv; n = 0
        for ln in L[i0+1:i1]:
            isinst = ln.startswith("    ") and not ln.strip().startswith((";", "."))
            if isinst:
                if cnt >= a.hopv:
                    out.append(f"L_hv{n}:")
                    out.append(f"    s_cbranch_execz L_hv{n+1}")
                    n += 1; cnt = 4
                cnt += isz(ln)
            out.append(ln)
        out = [x.replace(f"L_hv{n}", "L_hvdone") if x.endswith(f" L_hv{n}") else x for x in out]
        L[i0+1:i1] = out

    L.append('.section .rodata,"a"')
    L.append(".p2align 6")
    L.append(f".amdhsa_kernel {NAME}_kernel")
    L.append(f"  .amdhsa_next_free_vgpr {total}")
    L.append("  .amdhsa_next_free_sgpr " + ("100" if a.probe else "88"))
    L.append(f"  .amdhsa_accum_offset {accum}")
    L.append("  .amdhsa_group_segment_fixed_size 0")
    L.append("  .amdhsa_kernarg_size 64")
    L.append("  .amdhsa_user_sgpr_count 2")
    L.append("  .amdhsa_user_sgpr_kernarg_segment_ptr 1")
    L.append("  .amdhsa_system_sgpr_workgroup_id_x 1")
    L.append("  .amdhsa_float_denorm_mode_32 3")
    L.append(".end_amdhsa_kernel")
    return "\n".join(L) + "\n"

if __name__ == "__main__":
    p = argparse.ArgumentParser()
    p.add_argument("--w", type=int, default=22)
    p.add_argument("--wt", type=int, default=19)
    p.add_argument("--tev", type=int, default=1)
    p.add_argument("--eu", type=int, default=0)
    p.add_argument("--rx0", type=int, default=0)
    p.add_argument("--m", type=int, default=2)
    p.add_argument("--ls", type=int, default=16)
    p.add_argument("--f1", type=int, default=1)
    p.add_argument("--f2", type=int, default=0)
    p.add_argument("--thr", type=int, default=18)
    p.add_argument("--par", type=int, default=0)
    p.add_argument("--gain", type=int, default=0)
    p.add_argument("--emax", type=int, default=3)
    p.add_argument("--swarm", type=int, default=0)
    p.add_argument("--kfirst", type=int, default=0)
    p.add_argument("--plast", type=int, default=0)
    p.add_argument("--dirbit", type=int, default=-1)
    p.add_argument("--late", type=int, default=0)
    p.add_argument("--ncp", type=int, default=1)
    p.add_argument("--pol", default="nt")
    p.add_argument("--epol", default="")
    p.add_argument("--noe", type=int, default=0)
    p.add_argument("--nocomp", type=int, default=0)
    p.add_argument("--fakee", type=int, default=0)
    p.add_argument("--doc", type=int, default=0)
    p.add_argument("--noepro", type=int, default=0)
    p.add_argument("--prio", type=int, default=0)
    p.add_argument("--probe", type=int, default=0)
    p.add_argument("--pa", type=int, default=99)
    p.add_argument("--pb", type=int, default=0)
    p.add_argument("--warm", type=int, default=0)
    p.add_argument("--burst", type=int, default=0)
    p.add_argument("--clean", type=int, default=0)
    p.add_argument("--xend", type=int, default=29)
    p.add_argument("--rdpos", type=int, default=6)
    p.add_argument("--sleep", type=int, default=1)
    p.add_argument("--hopv", type=int, default=256)
    p.add_argument("--pf", type=int, default=1)
    p.add_argument("--minlds", type=int, default=90000)
    p.add_argument("--stamps", type=int, default=0)
    p.add_argument("-o", default="/dev/stdout")
    a = p.parse_args()
    open(a.o, "w").write(gen(a))
```
